```python
import torch

def _softmax(x, axis=-1):
    return torch.softmax(x, dim=axis)

def _gelu(x):
    return torch.nn.functional.gelu(x, approximate='tanh')

def _silu(x):
    return torch.nn.functional.silu(x)

def _sigmoid(x):
    return torch.sigmoid(x)

def _layernorm(x, axis=-1, eps=1e-05):
    m = x.mean(dim=axis, keepdim=True)
    v = x.var(dim=axis, keepdim=True, unbiased=False)
    return (x - m) / torch.sqrt(v + eps)

def _scatter_add(tgt, idx, src, axis=0):
    return tgt.clone().index_add_(axis, idx, src)

def _segment_sum(src, seg, n):
    out = torch.zeros((n,) + src.shape[1:], dtype=src.dtype)
    return out.index_add_(0, seg, src)

def _pad(x, pw):
    flat = tuple((v for pair in reversed(pw) for v in pair))
    return torch.nn.functional.pad(x, flat)
kernel_name = 'standalone__tree_speculative_verify_tree_attention_over_candidate_token_tree__decode'

def setup_inputs():

    _w = lambda a: (lambda t: t.to(torch.bfloat16) if t.is_floating_point() else t)(torch.as_tensor(a))
    B, Hq, Hkv, T, C, D = (2, 32, 4, 1, 16384, 128)
    tree_mask = torch.zeros((B, T, T), dtype=float)
    for b in range(B):
        parent = torch.zeros(T, dtype=torch.int64)
        for i in range(1, T):
            parent[i] = int(torch.randint(0, i, (1,)).item())
        for i in range(T):
            j = i
            tree_mask[b, i, j] = 1.0
            while j > 0:
                j = parent[j]
                tree_mask[b, i, j] = 1.0
    return {'q': _w((lambda *s: torch.randn(*s, dtype=torch.bfloat16) * 0.8)(B, Hq, T, D)), 'k_cache': _w((lambda *s: torch.randn(*s, dtype=torch.bfloat16) * 0.8)(B, Hkv, C, D)), 'v_cache': _w((lambda *s: torch.randn(*s, dtype=torch.bfloat16) * 0.05)(B, Hkv, C, D)), 'k_tree': _w((lambda *s: torch.randn(*s, dtype=torch.bfloat16) * 0.8)(B, Hkv, T, D)), 'v_tree': _w((lambda *s: torch.randn(*s, dtype=torch.bfloat16) * 0.05)(B, Hkv, T, D)), 'tree_mask': _w(tree_mask)}

def reference(q, k_cache, v_cache, k_tree, v_tree, tree_mask):
    B, Hq, T, D = q.shape
    Hkv, C = (k_cache.shape[1], k_cache.shape[2])
    rep = Hq // Hkv
    kc = (lambda x, n, axis: torch.repeat_interleave(x, n, dim=axis))(k_cache, rep, axis=1)
    vc = (lambda x, n, axis: torch.repeat_interleave(x, n, dim=axis))(v_cache, rep, axis=1)
    kt = (lambda x, n, axis: torch.repeat_interleave(x, n, dim=axis))(k_tree, rep, axis=1)
    vt = (lambda x, n, axis: torch.repeat_interleave(x, n, dim=axis))(v_tree, rep, axis=1)
    k = torch.concatenate([kc, kt], axis=2)
    v = torch.concatenate([vc, vt], axis=2)
    scale = D ** (-0.5)
    scores = torch.einsum('bhqd,bhkd->bhqk', q, k) * scale
    ctx_mask = torch.ones((B, 1, T, C), dtype=scores.dtype)
    tm = tree_mask[:, None, :, :].clone()
    full_mask = torch.concatenate([ctx_mask, tm], axis=-1)
    scores = scores + (1.0 - full_mask) * -1000000000.0
    p = _softmax(scores, axis=-1)
    return torch.einsum('bhqk,bhkd->bhqd', p, v)
```

```python
import re

REG_RE = re.compile(r'\b([vas])(\d+)\b|\b([vas])\[(\d+):(\d+)\]|\b(vcc|exec|m0)(_lo|_hi)?\b')
TRANS = ('v_exp_f32', 'v_log_f32', 'v_rcp_f32', 'v_rsq_f32', 'v_sqrt_f32')


def regs_of(tok):
    out = set()
    for m in REG_RE.finditer(tok):
        if m.group(1):
            out.add((m.group(1), int(m.group(2))))
        elif m.group(3):
            for i in range(int(m.group(4)), int(m.group(5)) + 1):
                out.add((m.group(3), i))
        else:
            out.add((m.group(6), 0))
    return out


def split_ops(rest):
    ops, depth, cur = [], 0, ''
    for ch in rest:
        if ch == '[':
            depth += 1
        if ch == ']':
            depth -= 1
        if ch == ',' and depth == 0:
            ops.append(cur.strip())
            cur = ''
        else:
            cur += ch
    if cur.strip():
        ops.append(cur.strip())
    return ops


class Ins:
    def __init__(self, text):
        self.text = text
        t = text.split(';')[0].strip()
        parts = t.split(None, 1)
        self.op = parts[0]
        rest = parts[1] if len(parts) > 1 else ''
        ops = split_ops(rest)
        self.mods = ''
        if ops:
            last = ops[-1].split(None, 1)
            ops[-1] = last[0]
            self.mods = last[1] if len(last) > 1 else ''
        self.ops = ops
        op = self.op
        self.mfma = op.startswith('v_mfma')
        self.valu = op.startswith('v_') and not self.mfma
        self.vmem = op.startswith('buffer_') or op.startswith('global_')
        self.ds = op.startswith('ds_')
        self.salu = op.startswith('s_')
        self.dpp = self.valu and ('_dpp' in op or 'quad_perm' in self.mods or 'row_' in self.mods)
        self.permlane = op.startswith('v_permlane')
        self.readlane = op.startswith('v_readlane') or op.startswith('v_readfirstlane')
        self.trans = any(op.startswith(x) for x in TRANS)
        self.nops = 1
        if op == 's_nop':
            self.nops = int(ops[0], 0) + 1
        R = [regs_of(o) for o in ops]
        d, u = set(), set()
        self.srcc = set()
        self.ab = set()
        self.store_wide = set()
        if self.mfma:
            d = R[0]
            self.ab = R[1] | R[2]
            self.srcc = R[3]
            u = self.ab | self.srcc
        elif self.valu:
            if self.permlane and 'swap' in op:
                d = R[0] | R[1]
                u = set(d)
            elif op.startswith('v_cmpx'):
                d = {('exec', 0)}
                for r in R:
                    u |= r
            elif '_co_' in op:
                d = R[0] | R[1]
                for r in R[2:]:
                    u |= r
            else:
                d = R[0] if R else set()
                for r in R[1:]:
                    u |= r
                if op.startswith(('v_fmac', 'v_mac', 'v_writelane')) or self.dpp:
                    u |= R[0]
                if op.startswith('v_cndmask') and len(ops) == 3:
                    u.add(('vcc', 0))
        elif self.vmem:
            is_store = '_store_' in op
            is_atomic = '_atomic_' in op
            lds = bool(re.search(r'\blds\b', self.mods)) or '_lds_' in op
            if is_store or (is_atomic and 'sc0' not in self.mods) or lds:
                for r in R:
                    u |= r
                if is_store and ('x3' in op or 'x4' in op):
                    self.store_wide = R[0] if op.startswith('buffer_') else R[1]
                if lds:
                    u.add(('m0', 0))
            else:
                d = R[0]
                for r in R[1:]:
                    u |= r
                if 'd16' in op:
                    u |= R[0]
        elif self.ds:
            if op.startswith('ds_read') or 'permute' in op or 'swizzle' in op or 'rtn' in op:
                d = R[0]
                for r in R[1:]:
                    u |= r
            else:
                for r in R:
                    u |= r
        elif self.salu:
            if op.startswith(('s_cmp', 's_cbranch', 's_branch', 's_waitcnt', 's_barrier', 's_nop', 's_endpgm',
                              's_setprio', 's_sleep', 's_bitcmp')):
                for r in R:
                    u |= r
            else:
                d = R[0] if R else set()
                for r in R[1:]:
                    u |= r
        self.d, self.u = d, u


def need(p, c):
    n = 0
    vd = {r for r in p.d if r[0] in 'va'}
    sd = {r for r in p.d if r[0] == 's' or r[0] == 'vcc'}
    if p.valu:
        if c.mfma and vd & c.u:
            n = max(n, 2)
        if c.vmem and sd & c.u:
            n = max(n, 5)
        if c.valu and sd & c.u:
            n = max(n, 4 if c.readlane or c.op.startswith('v_writelane') else 2)
        if c.readlane and vd & c.u:
            n = max(n, 1)
        if (c.dpp or c.permlane) and vd & c.u:
            n = max(n, 2)
        if p.trans and c.valu and not c.trans and vd & c.u:
            n = max(n, 1)
        if p.trans and (c.mfma or c.vmem or c.ds) and vd & c.u:
            n = max(n, 2)
        if ('exec', 0) in p.d:
            if c.dpp:
                n = max(n, 5)
            if c.mfma or c.readlane or c.permlane:
                n = max(n, 4)
            if c.valu and ('exec', 0) in c.u:
                n = max(n, 2)
        if (('op_sel' in p.mods and not p.op.startswith('v_pk_')) or 'sdwa' in p.op or 'dst_sel' in p.mods) and c.valu and vd & (c.u | c.d):
            n = max(n, 1)
    if p.mfma:
        passes = 8 if '32x32' in p.op else 4
        big = {4: 8, 8: 12}[passes]
        if c.mfma:
            if p.d & c.ab:
                n = max(n, big)
            if p.d & c.srcc and not (p.d == c.srcc and p.op == c.op):
                n = max(n, {4: 6, 8: 10}[passes])
            if p.d & c.d and not (p.d == c.srcc and p.op == c.op):
                n = max(n, big)
        elif c.valu or c.vmem or c.ds:
            if p.d & (c.u | c.d):
                n = max(n, big)
        if c.valu and p.srcc & c.d:
            n = max(n, {4: 3, 8: 7}[passes])
    if p.store_wide and p.store_wide & c.d:
        n = max(n, 2)
    if p.salu and ('m0', 0) in p.d and c.vmem and ('m0', 0) in c.u:
        n = max(n, 1)
    return n


class Asm:
    def __init__(self):
        self.lines = []
        self.hist = []
        self.vm_issued = 0
        self.vm_done = 0
        self.tags = {}
        self.maxout = 0
        self.fwd = {}
        self.seen_labels = set()

    def raw(self, text):
        self.lines.append(text)

    def label(self, name):
        self.lines.append(name + ':')
        if name in self.fwd:
            mark = self.fwd.pop(name)
            seen = False
            for p in self.hist:
                if seen:
                    p.nops = 0
                if p is mark:
                    seen = True
            if not seen:
                for p in self.hist:
                    p.nops = 0

    def comment(self, text):
        self.lines.append('    ; ' + text)

    def __call__(self, text, tag=None, count=True):
        ins = Ins(text)
        dist = 0
        pad = 0
        for p in reversed(self.hist):
            if dist >= 20:
                break
            n = need(p, ins)
            if n - dist > pad:
                pad = n - dist
            dist += p.nops
        if pad > 0:
            nop = Ins('s_nop %d' % (pad - 1))
            self.lines.append('    ' + nop.text)
            self.hist.append(nop)
        self.lines.append('    ' + text)
        self.hist.append(ins)
        if ins.op.startswith(('s_cbranch', 's_branch')) and (ins.ops[0] + ':') not in self.lines:
            self.fwd.setdefault(ins.ops[0], ins)
        if len(self.hist) > 400:
            self.hist = self.hist[-300:]
        if ins.vmem and count:
            if tag is not None:
                self.tags[tag] = self.vm_issued
            self.vm_issued += 1
            out = self.vm_issued - self.vm_done
            self.maxout = max(self.maxout, out)
            assert out <= 63, 'too many vmem ops outstanding: %d at %s' % (out, text)
        return ins

    def wait_vm(self, tag, extra=''):
        idx = self.tags[tag]
        if idx < self.vm_done and not extra:
            return
        n = self.vm_issued - idx - 1
        self('s_waitcnt vmcnt(%d)%s' % (n, (' ' + extra) if extra else ''))
        self.vm_done = max(self.vm_done, idx + 1)

    def wait_all(self, extra=''):
        self('s_waitcnt vmcnt(0)%s' % ((' ' + extra) if extra else ''))
        self.vm_done = self.vm_issued

    def flush_hazards(self, n=12):
        self.hist = []

    def text(self):
        return '\n'.join(self.lines) + '\n'
```

```python
import argparse
import math
import struct
import sys

from asmlib import Asm

NAME = 'standalone__tree_speculative_verify_tree_attention_over_candidate_token_tree__decode'


def f32(x):
    return '0x%08x' % struct.unpack('<I', struct.pack('<f', x))[0]


C_SCALE = (128.0 ** -0.5) * math.log2(math.e)
NEG_BIG = -1.0e9 * math.log2(math.e)

ML_OFF = 1 << 20
PROF_OFF = 2 << 20
WS_RECORDS = 3 << 20

LDS_MAX = 0
LDS_L = 1024
LDS_ACC = 2048
LDS_TOTAL = 2048 + 4 * 4224

S_GROUP, S_SPLIT = 22, 23
SRD_K, SRD_V, SRD_W = 24, 28, 32
S_T0 = 36
S_OFF = 40
S_SEL_LO, S_SEL_HI = 48, 49
S_C = 50
S_MASKLO = 52
S_MASKW = 54
S_HEAD, S_Q = 55, 56
S_CNT = 57
S_NEGBIG = 58
S_FE = 59
S_TS = 64


def soff(t):
    return '0' if t == 0 else 's%d' % (S_OFF + t)


def vr(base, n=4):
    return 'v[%d:%d]' % (base, base + n - 1)


class Gen:
    def __init__(self, args):
        self.o = args
        self.a = Asm()
        self.nts = 0

    def stamp(self):
        if not self.o.prof:
            return
        a = self.a
        a('s_memrealtime s[%d:%d]' % (S_TS + 2 * self.nts, S_TS + 2 * self.nts + 1))
        self.nts += 1

    def dump_stamps(self, vt):
        if not self.o.prof:
            return
        a = self.a
        a('s_waitcnt lgkmcnt(0)')
        a('s_lshl_b32 s36, s2, 2')
        a('s_add_u32 s36, s36, s3')
        a('s_lshl_b32 s36, s36, 6')
        a('s_add_u32 s36, s36, 0x%x' % PROF_OFF)
        a('s_mov_b64 exec, 1')
        a('v_mov_b32 v%d, s36' % vt)
        for i in range(self.nts):
            a('v_mov_b32 v%d, s%d' % (vt + 1, S_TS + 2 * i))
            a('buffer_store_dword v%d, v%d, s[%d:%d], 0 offen offset:%d' % (vt + 1, vt, SRD_W, SRD_W + 3, 4 * i),
              count=False)
            a('s_waitcnt vmcnt(0)')

    def consumer_setup_addr(self, V):
        a = self.a
        a('s_lshl_b32 s36, s%d, 17' % S_GROUP)
        a('s_lshl_b32 s37, s%d, 10' % S_Q)
        a('s_lshl_b32 s38, s%d, 7' % S_HEAD)
        a('s_add_u32 s36, s36, s37')
        a('s_add_u32 s36, s36, s38')
        a('v_lshrrev_b32 v%d, 3, v0' % V['t0'])
        a('v_and_b32 v%d, 7, v0' % V['t1'])
        a('v_lshlrev_b32 v%d, 14, v%d' % (V['co'], V['t0']))
        a('v_lshl_add_u32 v%d, v%d, 4, v%d' % (V['co'], V['t1'], V['co']))
        a('v_add_u32 v%d, s36, v%d' % (V['co'], V['co']))
        a('s_lshl_b32 s37, s%d, 3' % S_GROUP)
        a('s_add_u32 s37, s37, s%d' % S_HEAD)
        a('s_lshl_b32 s37, s37, 8')
        a('s_add_u32 s38, s37, 0x%x' % ML_OFF)
        a('v_lshlrev_b32 v%d, 5, v%d' % (V['cml'], V['t0']))
        a('v_add_u32 v%d, s38, v%d' % (V['cml'], V['cml']))
        a('v_lshlrev_b32 v%d, 2, v0' % V['t2'])
        a('v_add_u32 v%d, s37, v%d' % (V['tq'], V['t2']))
        a('s_lshl_b32 s38, s%d, 8' % S_GROUP)
        a('v_add_u32 v%d, s38, v%d' % (V['tk'], V['t2']))
        a('v_bfe_u32 v%d, v0, 4, 1' % V['t0'])
        a('v_bfe_u32 v%d, v0, 5, 1' % V['t2'])
        a('v_lshl_add_u32 v%d, v%d, 1, v%d' % (V['t0'], V['t0'], V['t2']))
        a('v_lshl_add_u32 v%d, v%d, 3, v%d' % (V['t0'], V['t0'], V['t1']))
        a('s_lshl_b32 s39, s%d, 5' % S_Q)
        a('v_add_u32 v%d, s39, v%d' % (V['t0'], V['t0']))
        a('v_lshlrev_b32 v%d, 1, v%d' % (V['t0'], V['t0']))
        a('v_add_u32 v%d, s37, v%d' % (V['cout'], V['t0']))
        a('v_add_u32 v%d, s38, v%d' % (V['tv'], V['t0']))

    def consumer_tree_loads(self, V):
        a = self.a
        a('global_load_dword v%d, v%d, s[4:5]' % (V['tq'], V['tq']), tag='tq')
        a('global_load_dword v%d, v%d, s[10:11]' % (V['tk'], V['tk']), tag='tk')
        a('global_load_ushort v%d, v%d, s[12:13]' % (V['tv'], V['tv']), tag='tv')

    def consumer_tree_score(self, V):
        a = self.a
        t0, t1, t2 = V['t0'], V['t1'], V['t2']
        tq, tk = V['tq'], V['tk']
        a('v_lshlrev_b32 v%d, 16, v%d' % (t0, tq))
        a('v_lshlrev_b32 v%d, 16, v%d' % (t1, tk))
        a('v_and_b32 v%d, 0xffff0000, v%d' % (tq, tq))
        a('v_and_b32 v%d, 0xffff0000, v%d' % (tk, tk))
        a('v_mul_f32 v%d, v%d, v%d' % (t0, t0, t1))
        a('v_fmac_f32 v%d, v%d, v%d' % (t0, tq, tk))
        a('v_lshlrev_b32 v%d, 16, v%d' % (V['tv'], V['tv']))
        for sh in (8, 4, 2, 1):
            a('v_add_f32_dpp v%d, v%d, v%d row_ror:%d row_mask:0xf bank_mask:0xf' % (t0, t0, t0, sh))
        a('v_mov_b32 v%d, v%d' % (t1, t0))
        a('v_permlane16_swap_b32 v%d, v%d' % (t0, t1))
        a('v_add_f32 v%d, v%d, v%d' % (t0, t0, t1))
        a('v_mov_b32 v%d, v%d' % (t1, t0))
        a('v_permlane32_swap_b32 v%d, v%d' % (t0, t1))
        a('v_add_f32 v%d, v%d, v%d' % (t0, t0, t1))
        a('s_lshr_b32 s36, s%d, 2' % S_GROUP)
        a('s_lshl_b32 s36, s36, 4')
        a('s_lshr_b32 s36, s%d, s36' % S_MASKW)
        a('s_lshl_b32 s36, s36, 16')
        a('v_mov_b32 v%d, s36' % t1)
        a('v_sub_f32 v%d, 1.0, v%d' % (t1, t1))
        a('v_mul_f32 v%d, s%d, v%d' % (t1, S_NEGBIG, t1))
        a('v_fma_f32 v%d, v%d, s%d, v%d' % (tq, t0, S_C, t1))

    def consumer_weights(self, V):
        a = self.a
        ml = V['ml']
        t0, t1, t2 = V['t0'], V['t1'], V['t2']
        a('v_max3_f32 v%d, v%d, v%d, v%d' % (t0, ml, ml + 2, ml + 4))
        a('v_max3_f32 v%d, v%d, v%d, v%d' % (t0, t0, ml + 6, V['tq']))
        a('v_max_f32_dpp v%d, v%d, v%d row_ror:8 row_mask:0xf bank_mask:0xf' % (t0, t0, t0))
        a('v_mov_b32 v%d, v%d' % (t1, t0))
        a('v_permlane16_swap_b32 v%d, v%d' % (t0, t1))
        a('v_max_f32 v%d, v%d, v%d' % (t0, t0, t1))
        a('v_mov_b32 v%d, v%d' % (t1, t0))
        a('v_permlane32_swap_b32 v%d, v%d' % (t0, t1))
        a('v_max_f32 v%d, v%d, v%d' % (t0, t0, t1))
        for i in range(4):
            a('v_sub_f32 v%d, v%d, v%d' % (ml + 2 * i, ml + 2 * i, t0))
        a('v_sub_f32 v%d, v%d, v%d' % (V['tq'], V['tq'], t0))
        for i in range(4):
            a('v_exp_f32 v%d, v%d' % (ml + 2 * i, ml + 2 * i))
        a('v_exp_f32 v%d, v%d' % (V['tq'], V['tq']))
        a('v_mul_f32 v%d, v%d, v%d' % (t0, ml, ml + 1))
        for i in range(1, 4):
            a('v_fmac_f32 v%d, v%d, v%d' % (t0, ml + 2 * i, ml + 2 * i + 1))
        a('v_add_f32_dpp v%d, v%d, v%d row_ror:8 row_mask:0xf bank_mask:0xf' % (t0, t0, t0))
        a('v_mov_b32 v%d, v%d' % (t1, t0))
        a('v_permlane16_swap_b32 v%d, v%d' % (t0, t1))
        a('v_add_f32 v%d, v%d, v%d' % (t0, t0, t1))
        a('v_mov_b32 v%d, v%d' % (t1, t0))
        a('v_permlane32_swap_b32 v%d, v%d' % (t0, t1))
        a('v_add_f32 v%d, v%d, v%d' % (t0, t0, t1))
        a('v_add_f32 v%d, v%d, v%d' % (t0, t0, V['tq']))
        a('v_rcp_f32 v%d, v%d' % (t0, t0))
        a('v_mul_f32 v%d, v%d, v%d' % (V['tv'], V['tv'], V['tq']))
        for i in range(4):
            a('v_mul_f32 v%d, v%d, v%d' % (ml + 2 * i, ml + 2 * i, t0))
        a('v_mul_f32 v%d, v%d, v%d' % (V['tv'], V['tv'], t0))

    def consumer_o_loads(self, V, sc):
        a = self.a
        for i in range(4):
            a('buffer_load_dwordx4 %s, v%d, s[%d:%d], %s offen%s' % (
                vr(V['o'] + 4 * i), V['co'], SRD_W, SRD_W + 3, soff(i), sc), tag='o%d' % i)

    def consumer_ml_loads(self, V, sc):
        a = self.a
        for i in range(2):
            a('buffer_load_dwordx4 %s, v%d, s[%d:%d], 0 offen offset:%d%s' % (
                vr(V['ml'] + 4 * i), V['cml'], SRD_W, SRD_W + 3, 16 * i, sc), tag='ml%d' % i)

    def consumer_final(self, V):
        a = self.a
        o, ml = V['o'], V['ml']
        for r in range(4):
            a('v_mul_f32 v%d, v%d, v%d' % (o + r, o + r, ml))
        for i in range(1, 4):
            for r in range(4):
                a('v_fmac_f32 v%d, v%d, v%d' % (o + r, o + 4 * i + r, ml + 2 * i))
        a('v_permlane32_swap_b32 v%d, v%d' % (o, o + 1))
        a('v_permlane32_swap_b32 v%d, v%d' % (o + 2, o + 3))
        a('v_add_f32 v%d, v%d, v%d' % (o, o, o + 1))
        a('v_add_f32 v%d, v%d, v%d' % (o + 2, o + 2, o + 3))
        a('v_permlane16_swap_b32 v%d, v%d' % (o, o + 2))
        a('v_add_f32 v%d, v%d, v%d' % (o, o, o + 2))
        a('v_add_f32_dpp v%d, v%d, v%d row_ror:8 row_mask:0xf bank_mask:0xf' % (o, o, o))
        a('v_add_f32 v%d, v%d, v%d' % (o, o, V['tv']))
        a('v_cvt_pk_bf16_f32 v%d, v%d, v%d' % (o, o, o))
        a('s_mov_b64 exec, s[%d:%d]' % (S_MASKLO, S_MASKLO + 1))
        a('global_store_short v%d, v%d, s[16:17]' % (V['cout'], o))

    def consts(self):
        a = self.a
        for t in range(1, 8):
            a('s_mov_b32 s%d, 0x%x' % (S_OFF + t, t * 4096))
        a('s_mov_b32 s%d, 0x00ff00ff' % S_MASKLO)
        a('s_mov_b32 s%d, 0x00ff00ff' % (S_MASKLO + 1))
        a('s_mov_b32 s%d, %s' % (S_C, f32(C_SCALE)))
        a('s_mov_b32 s%d, %s' % (S_NEGBIG, f32(NEG_BIG)))

    def main_kernel(self, label):
        o, a = self.o, self.a
        fused = o.mode == 'fused'
        ntk = ' nt' if o.ntk else ''
        ntv = ' nt' if o.ntv else ''
        VK, VV, VQ = 1, 2, 3
        V = dict(t0=4, t1=5, t2=6, co=7, cml=56, tq=57, tk=58, tv=59, cout=60)
        VLDS = 61
        VLW = 62
        VLR = 63
        Q = 8
        ACC = 8
        S = 24
        VB = [64, 96, 128, 160]
        K = 128
        PLO, PHI, TMP = 192, 208, 224
        V['ml'] = 24
        V['o'] = 32
        VSENT = 48

        a.label(label)
        self.stamp()
        a('s_load_dwordx16 s[4:19], s[0:1], 0')
        a('s_load_dwordx2 s[20:21], s[0:1], 64')
        a('s_cmp_ge_u32 s2, 256')
        a('s_cbranch_scc1 L_end_%s' % label[-12:])
        a('v_lshrrev_b32 v1, 6, v0')
        a('v_and_b32 v0, 63, v0')
        a('v_readfirstlane_b32 s3, v1')
        a('s_and_b32 s%d, s2, 7' % S_GROUP)
        a('s_lshr_b32 s%d, s2, 3' % S_SPLIT)
        a('s_lshl_b32 s36, s%d, 22' % S_GROUP)
        a('s_lshl_b32 s37, s%d, 17' % S_SPLIT)
        a('s_add_u32 s36, s36, s37')
        a('v_lshrrev_b32 v%d, 4, v0' % V['t0'])
        a('v_lshlrev_b32 v%d, 4, v0' % VV)
        a('s_lshl_b32 s37, s3, 15')
        a('s_add_u32 s36, s36, s37')
        if o.kload == 'direct':
            a('v_and_b32 v%d, 3, v0' % V['t1'])
            a('v_bfe_u32 v%d, v0, 2, 2' % V['t2'])
            a('v_lshl_add_u32 v%d, v%d, 2, v%d' % (V['t1'], V['t1'], V['t2']))
            a('v_lshlrev_b32 v%d, 8, v%d' % (VK, V['t1']))
            a('v_lshl_add_u32 v%d, v%d, 4, v%d' % (VK, V['t0'], VK))
        a('v_and_b32 v%d, 7, v0' % V['t1'])
        a('v_lshlrev_b32 v%d, 8, v%d' % (VQ, V['t1']))
        a('v_lshl_add_u32 v%d, v%d, 4, v%d' % (VQ, V['t0'], VQ))
        a('s_lshl_b32 s37, s%d, 11' % S_GROUP)
        a('v_add_u32 v%d, s37, v%d' % (VQ, VQ))
        for t in range(1, 8):
            a('s_mov_b32 s%d, 0x%x' % (S_OFF + t, t * 4096))
        for srd in (SRD_K, SRD_V):
            a('s_mov_b32 s%d, 0x8000' % (srd + 2))
            a('s_mov_b32 s%d, 0x00020000' % (srd + 3))
        a('s_waitcnt lgkmcnt(0)')
        a('s_add_u32 s%d, s6, s36' % SRD_K)
        a('s_addc_u32 s%d, s7, 0' % (SRD_K + 1))
        a('s_add_u32 s%d, s8, s36' % SRD_V)
        a('s_addc_u32 s%d, s9, 0' % (SRD_V + 1))
        self.stamp()

        def kload(t):
            for j in range(4):
                if o.kload == 'direct':
                    a('buffer_load_dwordx4 %s, v%d, s[%d:%d], %s offen offset:%d%s' % (
                        vr(K + 16 * t + 4 * j), VK, SRD_K, SRD_K + 3, soff(t), 64 * j, ntk), tag='k%d_%d' % (t, j))
                else:
                    a('buffer_load_dwordx4 %s, v%d, s[%d:%d], %s offen offset:%d%s' % (
                        vr(K + 16 * t + 4 * j), VV, SRD_K, SRD_K + 3, soff(t), 1024 * j, ntk), tag='k%d_%d' % (t, j))

        def vload(blk, i):
            a('buffer_load_dwordx4 %s, v%d, s[%d:%d], %s offen offset:%d%s' % (
                vr(VB[blk] + 4 * i), VV, SRD_V, SRD_V + 3, soff(2 * blk + (i >> 2)), 1024 * (i & 3), ntv),
              tag='v%d_%d' % (blk, i))

        kload(0)
        for j in range(4):
            a('global_load_dwordx4 %s, v%d, s[4:5] offset:%d' % (vr(Q + 4 * j), VQ, 64 * j), tag='q%d' % j)
        for t in range(1, 8):
            kload(t)
        if not fused:
            for blk in range(2):
                for i in range(8):
                    vload(blk, i)
            self.stamp()

        a('s_mov_b32 s%d, s20' % SRD_W)
        a('s_mov_b32 s%d, s21' % (SRD_W + 1))
        a('s_mov_b32 s%d, 0x%x' % (SRD_W + 2, WS_RECORDS))
        a('s_mov_b32 s%d, 0x00020000' % (SRD_W + 3))
        a('s_mov_b32 s%d, 0x05040100' % S_SEL_LO)
        a('s_mov_b32 s%d, 0x07060302' % S_SEL_HI)
        a('s_mov_b32 s%d, 0x00ff00ff' % S_MASKLO)
        a('s_mov_b32 s%d, 0x00ff00ff' % (S_MASKLO + 1))
        a('s_mov_b32 s%d, %s' % (S_C, f32(C_SCALE)))
        a('s_mov_b32 s%d, 0xfffffffe' % S_FE)
        VPS, VPM = VK, VQ
        a('s_lshl_b32 s36, s%d, 17' % S_GROUP)
        a('s_lshl_b32 s37, s%d, 12' % S_SPLIT)
        a('s_lshl_b32 s38, s3, 10')
        a('s_add_u32 s36, s36, s37')
        a('s_add_u32 s36, s36, s38')
        a('v_add_u32 v%d, s36, v%d' % (VPS, VV))
        a('s_lshl_b32 s36, s%d, 11' % S_GROUP)
        a('s_lshl_b32 s37, s%d, 3' % S_SPLIT)
        a('s_add_u32 s36, s36, s37')
        a('s_add_u32 s36, s36, 0x%x' % ML_OFF)
        a('v_and_b32 v%d, 7, v0' % V['t1'])
        a('v_lshlrev_b32 v%d, 8, v%d' % (VPM, V['t1']))
        a('v_add_u32 v%d, s36, v%d' % (VPM, VPM))
        a('s_lshl_b32 s36, s3, 1')
        a('s_lshl_b64 s[60:61], 3, s36')
        if fused:
            for r in range(4):
                a('v_mov_b32 v%d, -1' % (VSENT + r))
            a('buffer_store_dwordx4 %s, v%d, s[%d:%d], 0 offen sc1' % (vr(VSENT), VPS, SRD_W, SRD_W + 3), tag='clr0')
            a('s_mov_b64 exec, s[60:61]')
            a('buffer_store_dwordx2 %s, v%d, s[%d:%d], 0 offen sc1' % (vr(VSENT, 2), VPM, SRD_W, SRD_W + 3),
              tag='clr1')
            a('s_mov_b64 exec, -1')
            a('s_load_dword s%d, s[14:15], 0' % S_MASKW)
            a('s_mov_b32 s%d, %s' % (S_NEGBIG, f32(NEG_BIG)))
            a('s_lshr_b32 s%d, s%d, 2' % (S_HEAD, S_SPLIT))
            a('s_and_b32 s%d, s%d, 3' % (S_Q, S_SPLIT))
            self.consumer_setup_addr(V)
            self.consumer_tree_loads(V)
            for blk in range(2):
                for i in range(8):
                    vload(blk, i)
            self.stamp()
        a('s_lshl_b32 s36, s3, 2')
        a('v_add_u32 v%d, s36, v%d' % (VLDS, VV))
        a('s_mul_i32 s36, s3, 4224')
        a('v_add_u32 v%d, s36, v%d' % (VLW, VV))
        a('v_and_b32 v%d, 3, v0' % V['t0'])
        a('v_mul_u32_u24 v%d, 1056, v%d' % (VLR, V['t0']))
        a('v_bfe_u32 v%d, v0, 2, 1' % V['t0'])
        a('v_lshl_add_u32 v%d, v%d, 7, v%d' % (VLR, V['t0'], VLR))
        a('v_lshrrev_b32 v%d, 3, v0' % V['t0'])
        a('v_lshl_add_u32 v%d, v%d, 4, v%d' % (VLR, V['t0'], VLR))
        a('s_lshl_b32 s36, s3, 8')
        a('v_add_u32 v%d, s36, v%d' % (VLR, VLR))

        for t in range(8):
            a.wait_vm('q3' if t == 0 else 'k%d_3' % t)
            if t == 0:
                self.stamp()
            for j in range(4):
                a('v_mfma_f32_16x16x32_bf16 %s, %s, %s, %s' % (
                    vr(S + 4 * t), vr(K + 16 * t + 4 * j), vr(Q + 4 * j), '0' if j == 0 else vr(S + 4 * t)))
            if t < 4:
                for i in range(4):
                    vload(2 + (t >> 1), 4 * (t & 1) + i)
        self.stamp()
        t0, t1, t2 = V['t0'], V['t1'], V['t2']
        a('v_max3_f32 v%d, v%d, v%d, v%d' % (t0, S, S + 1, S + 2))
        a('v_max3_f32 v%d, v%d, v%d, v%d' % (t1, S + 3, S + 4, S + 5))
        idx = 6
        flip = 0
        while idx < 32:
            d = (t0, t1)[flip]
            a('v_max3_f32 v%d, v%d, v%d, v%d' % (d, d, S + idx, S + idx + 1))
            idx += 2
            flip ^= 1
        a('v_max_f32 v%d, v%d, v%d' % (t0, t0, t1))
        a('v_mov_b32 v%d, v%d' % (t1, t0))
        a('v_permlane16_swap_b32 v%d, v%d' % (t0, t1))
        a('v_max_f32 v%d, v%d, v%d' % (t0, t0, t1))
        a('v_mov_b32 v%d, v%d' % (t1, t0))
        a('v_permlane32_swap_b32 v%d, v%d' % (t0, t1))
        a('v_max_f32 v%d, v%d, v%d' % (t0, t0, t1))
        a('ds_write_b32 v%d, v%d offset:%d' % (VLDS, t0, LDS_MAX))
        if fused:
            a.wait_vm('tv', 'lgkmcnt(0)')
        else:
            a('s_waitcnt lgkmcnt(0)')
        a('s_barrier')
        a('ds_read_b128 %s, v%d offset:%d' % (vr(TMP), VV, LDS_MAX))
        if fused:
            a('s_cmp_lg_u32 s3, 1')
            a('s_cbranch_scc1 L_noarr')
            a('s_mov_b64 exec, 1')
            a('s_lshl_b32 s36, s%d, 5' % S_GROUP)
            a('v_mov_b32 v%d, s36' % t1)
            a('v_mov_b32 v%d, 1' % t2)
            a('global_atomic_add v%d, v%d, s[18:19]' % (t1, t2), count=False)
            a('s_mov_b64 exec, -1')
            a.label('L_noarr')
        for r in range(4):
            a('v_mov_b32 v%d, 0x3f803f80' % (TMP + 4 + r))
        a('s_waitcnt lgkmcnt(0)')
        a('v_max3_f32 v%d, v%d, v%d, v%d' % (t0, TMP, TMP + 1, TMP + 2))
        a('v_max_f32 v%d, v%d, v%d' % (t0, t0, TMP + 3))
        MC = TMP + 8
        a('v_mul_f32 v%d, s%d, v%d' % (MC, S_C, t0))
        for i in range(32):
            a('v_fma_f32 v%d, v%d, s%d, -v%d' % (S + i, S + i, S_C, MC))
        for i in range(32):
            a('v_exp_f32 v%d, v%d' % (S + i, S + i))
        for i in range(16):
            a('v_cvt_pk_bf16_f32 v%d, v%d, v%d' % (S + 2 * i, S + 2 * i, S + 2 * i + 1))
        for i in range(16):
            a('v_cndmask_b32 v%d, 0, v%d, s[%d:%d]' % (PLO + i, S + 2 * i, S_MASKLO, S_MASKLO + 1))
        for b in range(4):
            a('v_mfma_f32_16x16x32_bf16 %s, %s, %s, %s' % (
                vr(TMP + 12), vr(TMP + 4), vr(PLO + 4 * b), '0' if b == 0 else vr(TMP + 12)))
        for i in range(16):
            a('v_cndmask_b32 v%d, v%d, 0, s[%d:%d]' % (PHI + i, S + 2 * i, S_MASKLO, S_MASKLO + 1))
        a('ds_write_b32 v%d, v%d offset:%d' % (VLDS, TMP + 12, LDS_L))
        a('s_waitcnt lgkmcnt(0)')
        a('s_barrier')
        a('ds_read_b128 %s, v%d offset:%d' % (vr(TMP), VV, LDS_L))
        if fused:
            self.consumer_tree_score(V)
        a('s_waitcnt lgkmcnt(0)')
        a('v_add_f32 v%d, v%d, v%d' % (TMP, TMP, TMP + 1))
        a('v_add_f32 v%d, v%d, v%d' % (TMP + 2, TMP + 2, TMP + 3))
        a('v_add_f32 v%d, v%d, v%d' % (MC + 1, TMP, TMP + 2))
        if fused:
            a('v_min_u32 v%d, s%d, v%d' % (MC, S_FE, MC))
            a('v_min_u32 v%d, s%d, v%d' % (MC + 1, S_FE, MC + 1))
        a('s_mov_b64 exec, s[60:61]')
        a('buffer_store_dwordx2 %s, v%d, s[%d:%d], 0 offen%s' % (
            vr(MC, 2), VPM, SRD_W, SRD_W + 3, ' sc1' if fused else ''), tag='mlst')
        a('s_mov_b64 exec, -1')
        self.stamp()

        for blk in range(4):
            if fused and blk == 3:
                a('s_cmp_lg_u32 s3, 0')
                a('s_cbranch_scc1 L_nocnt')
                a('s_lshl_b32 s36, s%d, 5' % S_GROUP)
                a('v_mov_b32 v%d, s36' % V['tk'])
                a('global_load_dword v%d, v%d, s[18:19] sc1' % (V['tk'], V['tk']), count=False)
                a.label('L_nocnt')
            for k in range(4):
                if blk == 3 or k == 0 or k == 2:
                    kk = k if blk == 3 else k + 1
                    a.wait_vm('v%d_%d' % (blk, 2 * kk + 1))
                for e in range(8):
                    x = VB[blk] + 4 * (2 * k) + (e >> 1)
                    y = VB[blk] + 4 * (2 * k + 1) + (e >> 1)
                    a('v_perm_b32 v%d, v%d, v%d, s%d' % (TMP + 4 * e + k, y, x, S_SEL_HI if e & 1 else S_SEL_LO))
            for e in range(8):
                ep = e & 3
                first = blk == 0 and e < 4
                a('v_mfma_f32_16x16x32_bf16 %s, %s, %s, %s' % (
                    vr(ACC + 4 * ep), vr(TMP + 4 * e), vr((PLO if e < 4 else PHI) + 4 * blk),
                    '0' if first else vr(ACC + 4 * ep)))
            if blk == 3:
                self.stamp()
        for ep in range(4):
            a('ds_write_b128 v%d, %s offset:%d' % (VLW, vr(ACC + 4 * ep), LDS_ACC + 1056 * ep))
        if fused:
            a('s_cmp_lg_u32 s3, 0')
            a('s_cbranch_scc1 L_noml')
            a('s_mov_b32 s%d, 0x%x' % (S_CNT, o.spin))
            a.label('L_cnt')
            a('s_waitcnt vmcnt(0)')
            a('v_readfirstlane_b32 s36, v%d' % V['tk'])
            a('s_cmp_eq_u32 s36, 32')
            a('s_cbranch_scc1 L_cntok')
            a('s_lshl_b32 s36, s%d, 5' % S_GROUP)
            a('v_mov_b32 v%d, s36' % V['tk'])
            a('global_load_dword v%d, v%d, s[18:19] sc1' % (V['tk'], V['tk']), count=False)
            a('s_sub_u32 s%d, s%d, 1' % (S_CNT, S_CNT))
            a('s_cbranch_scc0 L_cnt')
            a.label('L_cntok')
            a.vm_done = a.vm_issued
            n0 = a.vm_issued
            self.consumer_ml_loads(V, ' sc1')
            a.vm_issued = n0
            a.label('L_noml')
        a('s_waitcnt lgkmcnt(0)')
        a('s_barrier')
        R = TMP
        for w in range(4):
            a('ds_read_b128 %s, v%d offset:%d' % (vr(R + 4 * w), VLR, LDS_ACC + 4224 * w))
        a('s_waitcnt lgkmcnt(2)')
        for r in range(4):
            a('v_add_f32 v%d, v%d, v%d' % (R + r, R + r, R + 4 + r))
        a('s_waitcnt lgkmcnt(0)')
        for r in range(4):
            a('v_add_f32 v%d, v%d, v%d' % (R + 8 + r, R + 8 + r, R + 12 + r))
        for r in range(4):
            a('v_add_f32 v%d, v%d, v%d' % (R + r, R + r, R + 8 + r))
        if fused:
            for r in range(4):
                a('v_min_u32 v%d, s%d, v%d' % (R + r, S_FE, R + r))
        a('buffer_store_dwordx4 %s, v%d, s[%d:%d], 0 offen%s' % (
            vr(R), VPS, SRD_W, SRD_W + 3, ' sc1' if fused else ''))
        self.stamp()
        if fused:
            a('s_cmp_lg_u32 s3, 0')
            a('s_cbranch_scc1 L_done')
            self.consumer_o_loads(V, ' sc1')
            a('s_mov_b32 s%d, 0x%x' % (S_CNT, o.spin))
            a('s_waitcnt vmcnt(5)')
            a.label('L_mlchk')
            ml = V['ml']
            a('v_max3_u32 v%d, v%d, v%d, v%d' % (t0, ml, ml + 1, ml + 2))
            a('v_max3_u32 v%d, v%d, v%d, v%d' % (t1, ml + 3, ml + 4, ml + 5))
            a('v_max3_u32 v%d, v%d, v%d, v%d' % (t0, t0, ml + 6, ml + 7))
            a('v_max_u32 v%d, v%d, v%d' % (t0, t0, t1))
            a('v_cmp_eq_u32 vcc, -1, v%d' % t0)
            a('s_cbranch_vccz L_mlok')
            n0 = a.vm_issued
            self.consumer_ml_loads(V, ' sc1')
            a.vm_issued = n0
            a('s_waitcnt vmcnt(0)')
            a('s_sub_u32 s%d, s%d, 1' % (S_CNT, S_CNT))
            a('s_cbranch_scc0 L_mlchk')
            a.label('L_mlok')
            self.consumer_weights(V)
            a('s_mov_b32 s%d, 0x%x' % (S_CNT, o.spin))
            a.label('L_ochk')
            a('s_waitcnt vmcnt(0)')
            ob = V['o']
            a('v_max3_u32 v%d, v%d, v%d, v%d' % (t0, ob, ob + 1, ob + 2))
            a('v_max3_u32 v%d, v%d, v%d, v%d' % (t1, ob + 3, ob + 4, ob + 5))
            a('v_max3_u32 v%d, v%d, v%d, v%d' % (t2, ob + 6, ob + 7, ob + 8))
            a('v_max3_u32 v%d, v%d, v%d, v%d' % (t0, t0, ob + 9, ob + 10))
            a('v_max3_u32 v%d, v%d, v%d, v%d' % (t1, t1, ob + 11, ob + 12))
            a('v_max3_u32 v%d, v%d, v%d, v%d' % (t2, t2, ob + 13, ob + 14))
            a('v_max3_u32 v%d, v%d, v%d, v%d' % (t0, t0, t1, ob + 15))
            a('v_max_u32 v%d, v%d, v%d' % (t0, t0, t2))
            a('v_cmp_eq_u32 vcc, -1, v%d' % t0)
            a('s_cbranch_vccz L_ook')
            a('s_mov_b64 exec, vcc')
            n0 = a.vm_issued
            self.consumer_o_loads(V, ' sc1')
            a.vm_issued = n0
            a('s_mov_b64 exec, -1')
            a('s_sub_u32 s%d, s%d, 1' % (S_CNT, S_CNT))
            a('s_cbranch_scc0 L_ochk')
            a('s_waitcnt vmcnt(0)')
            a.label('L_ook')
            self.stamp()
            self.consumer_final(V)
            self.stamp()
            a.label('L_done')
        self.dump_stamps(t0)
        a.label('L_end_%s' % label[-12:])
        a('s_endpgm')

    def combine_kernel(self, label):
        a = self.a
        a.flush_hazards()
        a.vm_issued = a.vm_done = 0
        V = dict(t0=4, t1=5, t2=6, co=7, cml=8, tq=9, tk=10, tv=11, cout=12, ml=16, o=24)
        a.label(label)
        a('s_load_dwordx16 s[4:19], s[0:1], 0')
        a('s_load_dwordx2 s[20:21], s[0:1], 64')
        a('s_cmp_ge_u32 s2, 64')
        a('s_cbranch_scc1 L_end_comb')
        a('v_lshrrev_b32 v1, 6, v0')
        a('v_and_b32 v0, 63, v0')
        a('v_readfirstlane_b32 s%d, v1' % S_Q)
        a('s_and_b32 s%d, s2, 7' % S_GROUP)
        a('s_lshr_b32 s%d, s2, 3' % S_HEAD)
        self.consts()
        self.consumer_setup_addr(V)
        a('s_mov_b32 s%d, 0x%x' % (SRD_W + 2, WS_RECORDS))
        a('s_mov_b32 s%d, 0x00020000' % (SRD_W + 3))
        a('s_waitcnt lgkmcnt(0)')
        a('s_mov_b32 s%d, s20' % SRD_W)
        a('s_mov_b32 s%d, s21' % (SRD_W + 1))
        a('s_load_dword s%d, s[14:15], 0' % S_MASKW)
        self.consumer_tree_loads(V)
        self.consumer_ml_loads(V, '')
        self.consumer_o_loads(V, '')
        a.wait_vm('tv', 'lgkmcnt(0)')
        self.consumer_tree_score(V)
        a.wait_vm('ml1')
        self.consumer_weights(V)
        a.wait_all()
        self.consumer_final(V)
        a.label('L_end_comb')
        a('s_endpgm')

    def build(self):
        o = self.o
        main = NAME + '_kernel'
        head = ['; tree-attention decode: split-KV flash decoding, generated by gen.py (own generator)']
        lds = max(LDS_TOTAL, o.lds)
        if o.mode == 'fused':
            head.append('; @launch grid=(256,1,1) block=(256,1,1) lds=%d' % lds)
            kernels = [(main, 256)]
        else:
            head.append('; @launch kernel=%s grid=(256,1,1) block=(256,1,1) lds=%d' % (main, lds))
            head.append('; @launch kernel=combine_kernel grid=(64,1,1) block=(256,1,1) lds=0')
            kernels = [(main, 256), ('combine_kernel', 40)]
        head += ['.amdgcn_target "amdgcn-amd-amdhsa--gfx950"', '.text']
        a = self.a
        for k, _ in kernels:
            a.raw('.globl %s' % k)
            a.raw('.p2align 8')
            a.raw('.type %s,@function' % k)
            if k == main:
                self.main_kernel(k)
            else:
                self.combine_kernel(k)
        tail = ['.section .rodata,"a"']
        for k, nv in kernels:
            tail += ['.p2align 6', '.amdhsa_kernel %s' % k,
                     '  .amdhsa_next_free_vgpr %d' % nv,
                     '  .amdhsa_next_free_sgpr 102',
                     '  .amdhsa_accum_offset %d' % nv,
                     '  .amdhsa_group_segment_fixed_size 0',
                     '  .amdhsa_kernarg_size 72',
                     '  .amdhsa_user_sgpr_count 2',
                     '  .amdhsa_user_sgpr_kernarg_segment_ptr 1',
                     '  .amdhsa_system_sgpr_workgroup_id_x 1',
                     '.end_amdhsa_kernel']
        return '\n'.join(head) + '\n' + a.text() + '\n'.join(tail) + '\n'


def main():
    p = argparse.ArgumentParser()
    p.add_argument('--mode', default='two')
    p.add_argument('--kload', default='direct')
    p.add_argument('--ntk', type=int, default=0)
    p.add_argument('--ntv', type=int, default=0)
    p.add_argument('--prof', type=int, default=0)
    p.add_argument('--lds', type=int, default=0)
    p.add_argument('--spin', type=int, default=200000)
    p.add_argument('-o', default='cdna_kernels/%s.s' % NAME)
    args = p.parse_args()
    g = Gen(args)
    txt = g.build()
    open(args.o, 'w').write(txt)
    print('wrote', args.o, 'max outstanding', g.a.maxout, 'lines', txt.count('\n'), file=sys.stderr)


if __name__ == '__main__':
    main()
```

```python
import argparse
import math
import struct
import sys

from asmlib import Asm

NAME = 'standalone__tree_speculative_verify_tree_attention_over_candidate_token_tree__decode'


def f32(x):
    return '0x%08x' % struct.unpack('<I', struct.pack('<f', x))[0]


C_SCALE = (128.0 ** -0.5) * math.log2(math.e)
NEG_BIG = -1.0e9 * math.log2(math.e)

ML_OFF = 1 << 20
PROF_OFF = 2 << 20
WS_RECORDS = 3 << 20

LDS_MAX = 0
LDS_L = 1024
LDS_ACC = 2048
LDS_TOTAL = 2048 + 4 * 4224

S_GROUP, S_SPLIT = 22, 23
SRD_K, SRD_V, SRD_W = 24, 28, 32
S_T0 = 36
S_OFF = 40
S_SEL_LO, S_SEL_HI = 48, 49
S_C = 50
S_MASKLO = 52
S_MASKW = 54
S_HEAD, S_Q = 55, 56
S_CNT = 57
S_NEGBIG = 58
S_FE = 59
S_TS = 64


def soff(t):
    return '0' if t == 0 else 's%d' % (S_OFF + t)


def vr(base, n=4):
    return 'v[%d:%d]' % (base, base + n - 1)


class Gen:
    def __init__(self, args):
        self.o = args
        self.a = Asm()
        self.nts = 0

    def stamp(self):
        if not self.o.prof:
            return
        a = self.a
        a('s_memrealtime s[%d:%d]' % (S_TS + 2 * self.nts, S_TS + 2 * self.nts + 1))
        self.nts += 1

    def dump_stamps(self, vt):
        if not self.o.prof:
            return
        a = self.a
        a('s_waitcnt lgkmcnt(0)')
        if self.o.prof == 2:
            a('s_mov_b64 exec, 1')
            a('v_mov_b32 v%d, 0' % vt)
            a('s_not_b32 s36, s%d' % S_TS)
            a('v_mov_b32 v%d, s36' % (vt + 1))
            a('global_atomic_umax v%d, v%d, s[18:19] offset:4' % (vt, vt + 1), count=False)
            a('s_waitcnt vmcnt(0)')
            slots = [2, 3, 4, 5, 6, 7, 9, 10, 11, 12, 13, 14, 15]
            for i in range(self.nts):
                if i >= 8:
                    a('s_cmp_lg_u32 s3, 0')
                    a('s_cbranch_scc1 L_nost')
                a('v_mov_b32 v%d, s%d' % (vt + 1, S_TS + 2 * i))
                a('global_atomic_umax v%d, v%d, s[18:19] offset:%d' % (vt, vt + 1, 4 * slots[i]), count=False)
                a('s_waitcnt vmcnt(0)')
            a.label('L_nost')
            return
        a('s_lshl_b32 s36, s2, 2')
        a('s_add_u32 s36, s36, s3')
        a('s_lshl_b32 s36, s36, 6')
        a('s_add_u32 s36, s36, 0x%x' % PROF_OFF)
        a('s_mov_b64 exec, 1')
        a('v_mov_b32 v%d, s36' % vt)
        for i in range(self.nts):
            a('v_mov_b32 v%d, s%d' % (vt + 1, S_TS + 2 * i))
            a('buffer_store_dword v%d, v%d, s[%d:%d], 0 offen offset:%d' % (vt + 1, vt, SRD_W, SRD_W + 3, 4 * i),
              count=False)
            a('s_waitcnt vmcnt(0)')

    def consumer_setup_addr(self, V):
        a = self.a
        a('s_lshl_b32 s36, s%d, 17' % S_GROUP)
        a('s_lshl_b32 s37, s%d, 10' % S_Q)
        a('s_lshl_b32 s38, s%d, 7' % S_HEAD)
        a('s_add_u32 s36, s36, s37')
        a('s_add_u32 s36, s36, s38')
        a('v_lshrrev_b32 v%d, 3, v0' % V['t0'])
        a('v_and_b32 v%d, 7, v0' % V['t1'])
        a('v_lshlrev_b32 v%d, 14, v%d' % (V['co'], V['t0']))
        a('v_lshl_add_u32 v%d, v%d, 4, v%d' % (V['co'], V['t1'], V['co']))
        a('v_add_u32 v%d, s36, v%d' % (V['co'], V['co']))
        a('s_lshl_b32 s37, s%d, 3' % S_GROUP)
        a('s_add_u32 s37, s37, s%d' % S_HEAD)
        a('s_lshl_b32 s37, s37, 8')
        a('s_add_u32 s38, s37, 0x%x' % ML_OFF)
        a('v_lshlrev_b32 v%d, 5, v%d' % (V['cml'], V['t0']))
        a('v_add_u32 v%d, s38, v%d' % (V['cml'], V['cml']))
        a('v_lshlrev_b32 v%d, 2, v0' % V['t2'])
        a('v_add_u32 v%d, s37, v%d' % (V['tq'], V['t2']))
        a('s_lshl_b32 s38, s%d, 8' % S_GROUP)
        a('v_add_u32 v%d, s38, v%d' % (V['tk'], V['t2']))
        a('v_bfe_u32 v%d, v0, 4, 1' % V['t0'])
        a('v_bfe_u32 v%d, v0, 5, 1' % V['t2'])
        a('v_lshl_add_u32 v%d, v%d, 1, v%d' % (V['t0'], V['t0'], V['t2']))
        a('v_lshl_add_u32 v%d, v%d, 3, v%d' % (V['t0'], V['t0'], V['t1']))
        a('s_lshl_b32 s39, s%d, 5' % S_Q)
        a('v_add_u32 v%d, s39, v%d' % (V['t0'], V['t0']))
        a('v_lshlrev_b32 v%d, 1, v%d' % (V['t0'], V['t0']))
        a('v_add_u32 v%d, s37, v%d' % (V['cout'], V['t0']))
        a('v_add_u32 v%d, s38, v%d' % (V['tv'], V['t0']))

    def consumer_tree_loads(self, V):
        a = self.a
        a('global_load_dword v%d, v%d, s[4:5]' % (V['tq'], V['tq']), tag='tq')
        a('global_load_dword v%d, v%d, s[10:11]' % (V['tk'], V['tk']), tag='tk')
        a('global_load_ushort v%d, v%d, s[12:13]' % (V['tv'], V['tv']), tag='tv')

    def consumer_tree_score(self, V):
        a = self.a
        t0, t1, t2 = V['t0'], V['t1'], V['t2']
        tq, tk = V['tq'], V['tk']
        a('v_lshlrev_b32 v%d, 16, v%d' % (t0, tq))
        a('v_lshlrev_b32 v%d, 16, v%d' % (t1, tk))
        a('v_and_b32 v%d, 0xffff0000, v%d' % (tq, tq))
        a('v_and_b32 v%d, 0xffff0000, v%d' % (tk, tk))
        a('v_mul_f32 v%d, v%d, v%d' % (t0, t0, t1))
        a('v_fmac_f32 v%d, v%d, v%d' % (t0, tq, tk))
        a('v_lshlrev_b32 v%d, 16, v%d' % (V['tv'], V['tv']))
        for sh in (8, 4, 2, 1):
            a('v_add_f32_dpp v%d, v%d, v%d row_ror:%d row_mask:0xf bank_mask:0xf' % (t0, t0, t0, sh))
        a('v_mov_b32 v%d, v%d' % (t1, t0))
        a('v_permlane16_swap_b32 v%d, v%d' % (t0, t1))
        a('v_add_f32 v%d, v%d, v%d' % (t0, t0, t1))
        a('v_mov_b32 v%d, v%d' % (t1, t0))
        a('v_permlane32_swap_b32 v%d, v%d' % (t0, t1))
        a('v_add_f32 v%d, v%d, v%d' % (t0, t0, t1))
        a('s_lshr_b32 s36, s%d, 2' % S_GROUP)
        a('s_lshl_b32 s36, s36, 4')
        a('s_lshr_b32 s36, s%d, s36' % S_MASKW)
        a('s_lshl_b32 s36, s36, 16')
        a('v_mov_b32 v%d, s36' % t1)
        a('v_sub_f32 v%d, 1.0, v%d' % (t1, t1))
        a('v_mul_f32 v%d, s%d, v%d' % (t1, S_NEGBIG, t1))
        a('v_fma_f32 v%d, v%d, s%d, v%d' % (tq, t0, S_C, t1))

    def consumer_weights(self, V):
        a = self.a
        ml = V['ml']
        t0, t1, t2 = V['t0'], V['t1'], V['t2']
        a('v_max3_f32 v%d, v%d, v%d, v%d' % (t0, ml, ml + 2, ml + 4))
        a('v_max3_f32 v%d, v%d, v%d, v%d' % (t0, t0, ml + 6, V['tq']))
        a('v_max_f32_dpp v%d, v%d, v%d row_ror:8 row_mask:0xf bank_mask:0xf' % (t0, t0, t0))
        a('v_mov_b32 v%d, v%d' % (t1, t0))
        a('v_permlane16_swap_b32 v%d, v%d' % (t0, t1))
        a('v_max_f32 v%d, v%d, v%d' % (t0, t0, t1))
        a('v_mov_b32 v%d, v%d' % (t1, t0))
        a('v_permlane32_swap_b32 v%d, v%d' % (t0, t1))
        a('v_max_f32 v%d, v%d, v%d' % (t0, t0, t1))
        for i in range(4):
            a('v_sub_f32 v%d, v%d, v%d' % (ml + 2 * i, ml + 2 * i, t0))
        a('v_sub_f32 v%d, v%d, v%d' % (V['tq'], V['tq'], t0))
        for i in range(4):
            a('v_exp_f32 v%d, v%d' % (ml + 2 * i, ml + 2 * i))
        a('v_exp_f32 v%d, v%d' % (V['tq'], V['tq']))
        a('v_mul_f32 v%d, v%d, v%d' % (t0, ml, ml + 1))
        for i in range(1, 4):
            a('v_fmac_f32 v%d, v%d, v%d' % (t0, ml + 2 * i, ml + 2 * i + 1))
        a('v_add_f32_dpp v%d, v%d, v%d row_ror:8 row_mask:0xf bank_mask:0xf' % (t0, t0, t0))
        a('v_mov_b32 v%d, v%d' % (t1, t0))
        a('v_permlane16_swap_b32 v%d, v%d' % (t0, t1))
        a('v_add_f32 v%d, v%d, v%d' % (t0, t0, t1))
        a('v_mov_b32 v%d, v%d' % (t1, t0))
        a('v_permlane32_swap_b32 v%d, v%d' % (t0, t1))
        a('v_add_f32 v%d, v%d, v%d' % (t0, t0, t1))
        a('v_add_f32 v%d, v%d, v%d' % (t0, t0, V['tq']))
        a('v_rcp_f32 v%d, v%d' % (t0, t0))
        a('v_mul_f32 v%d, v%d, v%d' % (V['tv'], V['tv'], V['tq']))
        for i in range(4):
            a('v_mul_f32 v%d, v%d, v%d' % (ml + 2 * i, ml + 2 * i, t0))
        a('v_mul_f32 v%d, v%d, v%d' % (V['tv'], V['tv'], t0))

    def consumer_o_loads(self, V, sc):
        a = self.a
        for i in range(4):
            a('buffer_load_dwordx4 %s, v%d, s[%d:%d], %s offen%s' % (
                vr(V['o'] + 4 * i), V['co'], SRD_W, SRD_W + 3, soff(i), sc), tag='o%d' % i)

    def consumer_ml_loads(self, V, sc):
        a = self.a
        for i in range(2):
            a('buffer_load_dwordx4 %s, v%d, s[%d:%d], 0 offen offset:%d%s' % (
                vr(V['ml'] + 4 * i), V['cml'], SRD_W, SRD_W + 3, 16 * i, sc), tag='ml%d' % i)

    def consumer_final(self, V):
        a = self.a
        o, ml = V['o'], V['ml']
        for r in range(4):
            a('v_mul_f32 v%d, v%d, v%d' % (o + r, o + r, ml))
        for i in range(1, 4):
            for r in range(4):
                a('v_fmac_f32 v%d, v%d, v%d' % (o + r, o + 4 * i + r, ml + 2 * i))
        a('v_permlane32_swap_b32 v%d, v%d' % (o, o + 1))
        a('v_permlane32_swap_b32 v%d, v%d' % (o + 2, o + 3))
        a('v_add_f32 v%d, v%d, v%d' % (o, o, o + 1))
        a('v_add_f32 v%d, v%d, v%d' % (o + 2, o + 2, o + 3))
        a('v_permlane16_swap_b32 v%d, v%d' % (o, o + 2))
        a('v_add_f32 v%d, v%d, v%d' % (o, o, o + 2))
        a('v_add_f32_dpp v%d, v%d, v%d row_ror:8 row_mask:0xf bank_mask:0xf' % (o, o, o))
        a('v_add_f32 v%d, v%d, v%d' % (o, o, V['tv']))
        a('v_cvt_pk_bf16_f32 v%d, v%d, v%d' % (o, o, o))
        a('s_mov_b64 exec, s[%d:%d]' % (S_MASKLO, S_MASKLO + 1))
        a('global_store_short v%d, v%d, s[16:17]' % (V['cout'], o))

    def consts(self):
        a = self.a
        for t in range(1, 8):
            a('s_mov_b32 s%d, 0x%x' % (S_OFF + t, t * 4096))
        a('s_mov_b32 s%d, 0x00ff00ff' % S_MASKLO)
        a('s_mov_b32 s%d, 0x00ff00ff' % (S_MASKLO + 1))
        a('s_mov_b32 s%d, %s' % (S_C, f32(C_SCALE)))
        a('s_mov_b32 s%d, %s' % (S_NEGBIG, f32(NEG_BIG)))

    def main_kernel(self, label):
        o, a = self.o, self.a
        fused = o.mode == 'fused'
        ntk = ' nt' if o.ntk else ''
        ntv = ' nt' if o.ntv else ''
        VK, VV, VQ = 1, 2, 3
        V = dict(t0=4, t1=5, t2=6, co=7, cml=56, tq=57, tk=58, tv=59, cout=60)
        VLDS = 61
        VLW = 62
        VLR = 63
        Q = 8
        ACC = 8
        S = 24
        VB = [64, 96, 128, 160]
        K = 128
        PLO, PHI, TMP = 192, 208, 224
        V['ml'] = 24
        V['o'] = 32
        VSENT = 48

        a.label(label)
        self.stamp()
        a('s_load_dwordx16 s[4:19], s[0:1], 0')
        a('s_load_dwordx2 s[20:21], s[0:1], 64')
        a('s_cmp_ge_u32 s2, 256')
        a('s_cbranch_scc1 L_end_%s' % label[-12:])
        a('v_lshrrev_b32 v1, 6, v0')
        a('v_and_b32 v0, 63, v0')
        a('v_readfirstlane_b32 s3, v1')
        a('s_and_b32 s%d, s2, 7' % S_GROUP)
        a('s_lshr_b32 s%d, s2, 3' % S_SPLIT)
        a('s_lshl_b32 s36, s%d, 22' % S_GROUP)
        a('s_lshl_b32 s37, s%d, 17' % S_SPLIT)
        a('s_add_u32 s36, s36, s37')
        a('v_lshrrev_b32 v%d, 4, v0' % V['t0'])
        a('v_lshlrev_b32 v%d, 4, v0' % VV)
        a('s_lshl_b32 s37, s3, 15')
        a('s_add_u32 s36, s36, s37')
        if o.kload == 'direct':
            a('v_and_b32 v%d, 3, v0' % V['t1'])
            a('v_bfe_u32 v%d, v0, 2, 2' % V['t2'])
            a('v_lshl_add_u32 v%d, v%d, 2, v%d' % (V['t1'], V['t1'], V['t2']))
            a('v_lshlrev_b32 v%d, 8, v%d' % (VK, V['t1']))
            a('v_lshl_add_u32 v%d, v%d, 4, v%d' % (VK, V['t0'], VK))
        a('v_and_b32 v%d, 7, v0' % V['t1'])
        a('v_lshlrev_b32 v%d, 8, v%d' % (VQ, V['t1']))
        a('v_lshl_add_u32 v%d, v%d, 4, v%d' % (VQ, V['t0'], VQ))
        a('s_lshl_b32 s37, s%d, 11' % S_GROUP)
        a('v_add_u32 v%d, s37, v%d' % (VQ, VQ))
        for t in range(1, 8):
            a('s_mov_b32 s%d, 0x%x' % (S_OFF + t, t * 4096))
        for srd in (SRD_K, SRD_V):
            a('s_mov_b32 s%d, 0x8000' % (srd + 2))
            a('s_mov_b32 s%d, 0x00020000' % (srd + 3))
        a('s_waitcnt lgkmcnt(0)')
        a('s_add_u32 s%d, s6, s36' % SRD_K)
        a('s_addc_u32 s%d, s7, 0' % (SRD_K + 1))
        a('s_add_u32 s%d, s8, s36' % SRD_V)
        a('s_addc_u32 s%d, s9, 0' % (SRD_V + 1))
        self.stamp()

        def kload(t):
            for j in range(4):
                if o.kload == 'direct':
                    a('buffer_load_dwordx4 %s, v%d, s[%d:%d], %s offen offset:%d%s' % (
                        vr(K + 16 * t + 4 * j), VK, SRD_K, SRD_K + 3, soff(t), 64 * j, ntk), tag='k%d_%d' % (t, j))
                else:
                    a('buffer_load_dwordx4 %s, v%d, s[%d:%d], %s offen offset:%d%s' % (
                        vr(K + 16 * t + 4 * j), VV, SRD_K, SRD_K + 3, soff(t), 1024 * j, ntk), tag='k%d_%d' % (t, j))

        def vload(blk, i):
            a('buffer_load_dwordx4 %s, v%d, s[%d:%d], %s offen offset:%d%s' % (
                vr(VB[blk] + 4 * i), VV, SRD_V, SRD_V + 3, soff(2 * blk + (i >> 2)), 1024 * (i & 3), ntv),
              tag='v%d_%d' % (blk, i))

        kload(0)
        for j in range(4):
            a('global_load_dwordx4 %s, v%d, s[4:5] offset:%d' % (vr(Q + 4 * j), VQ, 64 * j), tag='q%d' % j)
        for t in range(1, 8):
            kload(t)
        if not fused:
            for blk in range(2):
                for i in range(8):
                    vload(blk, i)
            self.stamp()

        a('s_mov_b32 s%d, s20' % SRD_W)
        a('s_mov_b32 s%d, s21' % (SRD_W + 1))
        a('s_mov_b32 s%d, 0x%x' % (SRD_W + 2, WS_RECORDS))
        a('s_mov_b32 s%d, 0x00020000' % (SRD_W + 3))
        a('s_mov_b32 s%d, 0x05040100' % S_SEL_LO)
        a('s_mov_b32 s%d, 0x07060302' % S_SEL_HI)
        a('s_mov_b32 s%d, 0x00ff00ff' % S_MASKLO)
        a('s_mov_b32 s%d, 0x00ff00ff' % (S_MASKLO + 1))
        a('s_mov_b32 s%d, %s' % (S_C, f32(C_SCALE)))
        a('s_mov_b32 s%d, 0xfffffffe' % S_FE)
        VPS, VPM = VK, VQ
        a('s_lshl_b32 s36, s%d, 17' % S_GROUP)
        a('s_lshl_b32 s37, s%d, 12' % S_SPLIT)
        a('s_lshl_b32 s38, s3, 10')
        a('s_add_u32 s36, s36, s37')
        a('s_add_u32 s36, s36, s38')
        a('v_add_u32 v%d, s36, v%d' % (VPS, VV))
        a('s_lshl_b32 s36, s%d, 11' % S_GROUP)
        a('s_lshl_b32 s37, s%d, 3' % S_SPLIT)
        a('s_add_u32 s36, s36, s37')
        a('s_add_u32 s36, s36, 0x%x' % ML_OFF)
        a('v_and_b32 v%d, 7, v0' % V['t1'])
        a('v_lshlrev_b32 v%d, 8, v%d' % (VPM, V['t1']))
        a('v_add_u32 v%d, s36, v%d' % (VPM, VPM))
        a('s_lshl_b32 s36, s3, 1')
        a('s_lshl_b64 s[60:61], 3, s36')
        if fused:
            for r in range(4):
                a('v_mov_b32 v%d, -1' % (VSENT + r))
            a('buffer_store_dwordx4 %s, v%d, s[%d:%d], 0 offen sc1' % (vr(VSENT), VPS, SRD_W, SRD_W + 3), tag='clr0')
            a('s_mov_b64 exec, s[60:61]')
            a('buffer_store_dwordx2 %s, v%d, s[%d:%d], 0 offen sc1' % (vr(VSENT, 2), VPM, SRD_W, SRD_W + 3),
              tag='clr1')
            a('s_mov_b64 exec, -1')
            a('s_load_dword s%d, s[14:15], 0' % S_MASKW)
            a('s_mov_b32 s%d, %s' % (S_NEGBIG, f32(NEG_BIG)))
            a('s_lshr_b32 s%d, s%d, 2' % (S_HEAD, S_SPLIT))
            a('s_and_b32 s%d, s%d, 3' % (S_Q, S_SPLIT))
            self.consumer_setup_addr(V)
            self.consumer_tree_loads(V)
            for blk in range(2):
                for i in range(8):
                    vload(blk, i)
            self.stamp()
        a('s_lshl_b32 s36, s3, 2')
        a('v_add_u32 v%d, s36, v%d' % (VLDS, VV))
        a('s_mul_i32 s36, s3, 4224')
        a('v_add_u32 v%d, s36, v%d' % (VLW, VV))
        a('v_and_b32 v%d, 3, v0' % V['t0'])
        a('v_mul_u32_u24 v%d, 1056, v%d' % (VLR, V['t0']))
        a('v_bfe_u32 v%d, v0, 2, 1' % V['t0'])
        a('v_lshl_add_u32 v%d, v%d, 7, v%d' % (VLR, V['t0'], VLR))
        a('v_lshrrev_b32 v%d, 3, v0' % V['t0'])
        a('v_lshl_add_u32 v%d, v%d, 4, v%d' % (VLR, V['t0'], VLR))
        a('s_lshl_b32 s36, s3, 8')
        a('v_add_u32 v%d, s36, v%d' % (VLR, VLR))

        for t in range(8):
            a.wait_vm('q3' if t == 0 else 'k%d_3' % t)
            if t == 0:
                self.stamp()
            for j in range(4):
                a('v_mfma_f32_16x16x32_bf16 %s, %s, %s, %s' % (
                    vr(S + 4 * t), vr(K + 16 * t + 4 * j), vr(Q + 4 * j), '0' if j == 0 else vr(S + 4 * t)))
            if t < 4:
                for i in range(4):
                    vload(2 + (t >> 1), 4 * (t & 1) + i)
        self.stamp()
        t0, t1, t2 = V['t0'], V['t1'], V['t2']
        a('v_max3_f32 v%d, v%d, v%d, v%d' % (t0, S, S + 1, S + 2))
        a('v_max3_f32 v%d, v%d, v%d, v%d' % (t1, S + 3, S + 4, S + 5))
        idx = 6
        flip = 0
        while idx < 32:
            d = (t0, t1)[flip]
            a('v_max3_f32 v%d, v%d, v%d, v%d' % (d, d, S + idx, S + idx + 1))
            idx += 2
            flip ^= 1
        a('v_max_f32 v%d, v%d, v%d' % (t0, t0, t1))
        a('v_mov_b32 v%d, v%d' % (t1, t0))
        a('v_permlane16_swap_b32 v%d, v%d' % (t0, t1))
        a('v_max_f32 v%d, v%d, v%d' % (t0, t0, t1))
        a('v_mov_b32 v%d, v%d' % (t1, t0))
        a('v_permlane32_swap_b32 v%d, v%d' % (t0, t1))
        a('v_max_f32 v%d, v%d, v%d' % (t0, t0, t1))
        a('ds_write_b32 v%d, v%d offset:%d' % (VLDS, t0, LDS_MAX))
        if fused:
            a.wait_vm('tv', 'lgkmcnt(0)')
        else:
            a('s_waitcnt lgkmcnt(0)')
        a('s_barrier')
        a('ds_read_b128 %s, v%d offset:%d' % (vr(TMP), VV, LDS_MAX))
        if fused:
            a('s_cmp_lg_u32 s3, 1')
            a('s_cbranch_scc1 L_noarr')
            a('s_mov_b64 exec, 1')
            a('s_lshl_b32 s36, s%d, 5' % S_GROUP)
            a('v_mov_b32 v%d, s36' % t1)
            a('v_mov_b32 v%d, 1' % t2)
            a('global_atomic_add v%d, v%d, s[18:19]' % (t1, t2), count=False)
            a('s_mov_b64 exec, -1')
            a.label('L_noarr')
        for r in range(4):
            a('v_mov_b32 v%d, 0x3f803f80' % (TMP + 4 + r))
        a('s_waitcnt lgkmcnt(0)')
        a('v_max3_f32 v%d, v%d, v%d, v%d' % (t0, TMP, TMP + 1, TMP + 2))
        a('v_max_f32 v%d, v%d, v%d' % (t0, t0, TMP + 3))
        MC = TMP + 8
        a('v_mul_f32 v%d, s%d, v%d' % (MC, S_C, t0))
        for i in range(32):
            a('v_fma_f32 v%d, v%d, s%d, -v%d' % (S + i, S + i, S_C, MC))
        for i in range(32):
            a('v_exp_f32 v%d, v%d' % (S + i, S + i))
        for i in range(16):
            a('v_cvt_pk_bf16_f32 v%d, v%d, v%d' % (S + 2 * i, S + 2 * i, S + 2 * i + 1))
        for i in range(16):
            a('v_cndmask_b32 v%d, 0, v%d, s[%d:%d]' % (PLO + i, S + 2 * i, S_MASKLO, S_MASKLO + 1))
        for b in range(4):
            a('v_mfma_f32_16x16x32_bf16 %s, %s, %s, %s' % (
                vr(TMP + 12), vr(TMP + 4), vr(PLO + 4 * b), '0' if b == 0 else vr(TMP + 12)))
        for i in range(16):
            a('v_cndmask_b32 v%d, v%d, 0, s[%d:%d]' % (PHI + i, S + 2 * i, S_MASKLO, S_MASKLO + 1))
        a('ds_write_b32 v%d, v%d offset:%d' % (VLDS, TMP + 12, LDS_L))
        a('s_waitcnt lgkmcnt(0)')
        a('s_barrier')
        a('ds_read_b128 %s, v%d offset:%d' % (vr(TMP), VV, LDS_L))
        if fused:
            self.consumer_tree_score(V)
        a('s_waitcnt lgkmcnt(0)')
        a('v_add_f32 v%d, v%d, v%d' % (TMP, TMP, TMP + 1))
        a('v_add_f32 v%d, v%d, v%d' % (TMP + 2, TMP + 2, TMP + 3))
        a('v_add_f32 v%d, v%d, v%d' % (MC + 1, TMP, TMP + 2))
        if fused:
            a('v_min_u32 v%d, s%d, v%d' % (MC, S_FE, MC))
            a('v_min_u32 v%d, s%d, v%d' % (MC + 1, S_FE, MC + 1))
        a('s_mov_b64 exec, s[60:61]')
        a('buffer_store_dwordx2 %s, v%d, s[%d:%d], 0 offen%s' % (
            vr(MC, 2), VPM, SRD_W, SRD_W + 3, ' sc1' if fused else ''), tag='mlst')
        a('s_mov_b64 exec, -1')
        self.stamp()

        for blk in range(4):
            if fused and blk == 3:
                a('s_cmp_lg_u32 s3, 0')
                a('s_cbranch_scc1 L_nocnt')
                a('s_lshl_b32 s36, s%d, 5' % S_GROUP)
                a('v_mov_b32 v%d, s36' % V['tk'])
                a('global_load_dword v%d, v%d, s[18:19] sc1' % (V['tk'], V['tk']), count=False)
                a.label('L_nocnt')
            for k in range(4):
                if blk == 3 or k == 0 or k == 2:
                    kk = k if blk == 3 else k + 1
                    a.wait_vm('v%d_%d' % (blk, 2 * kk + 1))
                for e in range(8):
                    x = VB[blk] + 4 * (2 * k) + (e >> 1)
                    y = VB[blk] + 4 * (2 * k + 1) + (e >> 1)
                    a('v_perm_b32 v%d, v%d, v%d, s%d' % (TMP + 4 * e + k, y, x, S_SEL_HI if e & 1 else S_SEL_LO))
            for e in range(8):
                ep = e & 3
                first = blk == 0 and e < 4
                a('v_mfma_f32_16x16x32_bf16 %s, %s, %s, %s' % (
                    vr(ACC + 4 * ep), vr(TMP + 4 * e), vr((PLO if e < 4 else PHI) + 4 * blk),
                    '0' if first else vr(ACC + 4 * ep)))
            if blk == 3:
                self.stamp()
        for ep in range(4):
            a('ds_write_b128 v%d, %s offset:%d' % (VLW, vr(ACC + 4 * ep), LDS_ACC + 1056 * ep))
        if fused:
            a('s_cmp_lg_u32 s3, 0')
            a('s_cbranch_scc1 L_noml')
            a('s_mov_b32 s%d, 0x%x' % (S_CNT, o.spin))
            a.label('L_cnt')
            a('s_waitcnt vmcnt(0)')
            a('v_readfirstlane_b32 s36, v%d' % V['tk'])
            a('s_cmp_ge_u32 s36, 32')
            a('s_cbranch_scc1 L_cntok')
            a('s_lshl_b32 s36, s%d, 5' % S_GROUP)
            a('v_mov_b32 v%d, s36' % V['tk'])
            a('global_load_dword v%d, v%d, s[18:19] sc1' % (V['tk'], V['tk']), count=False)
            a('s_sub_u32 s%d, s%d, 1' % (S_CNT, S_CNT))
            a('s_cbranch_scc0 L_cnt')
            a.label('L_cntok')
            a.vm_done = a.vm_issued
            n0 = a.vm_issued
            self.consumer_ml_loads(V, ' sc1')
            a.vm_issued = n0
            a.label('L_noml')
        a('s_waitcnt lgkmcnt(0)')
        a('s_barrier')
        R = TMP
        for w in range(4):
            a('ds_read_b128 %s, v%d offset:%d' % (vr(R + 4 * w), VLR, LDS_ACC + 4224 * w))
        a('s_waitcnt lgkmcnt(2)')
        for r in range(4):
            a('v_add_f32 v%d, v%d, v%d' % (R + r, R + r, R + 4 + r))
        a('s_waitcnt lgkmcnt(0)')
        for r in range(4):
            a('v_add_f32 v%d, v%d, v%d' % (R + 8 + r, R + 8 + r, R + 12 + r))
        for r in range(4):
            a('v_add_f32 v%d, v%d, v%d' % (R + r, R + r, R + 8 + r))
        if fused:
            for r in range(4):
                a('v_min_u32 v%d, s%d, v%d' % (R + r, S_FE, R + r))
        a('buffer_store_dwordx4 %s, v%d, s[%d:%d], 0 offen%s' % (
            vr(R), VPS, SRD_W, SRD_W + 3, ' sc1' if fused else ''))
        self.stamp()
        if fused:
            a('s_cmp_lg_u32 s3, 0')
            a('s_cbranch_scc1 L_done')
            self.consumer_o_loads(V, ' sc1')
            a('s_mov_b32 s%d, 0x%x' % (S_CNT, o.spin))
            a('s_waitcnt vmcnt(5)')
            a.label('L_mlchk')
            ml = V['ml']
            a('v_max3_u32 v%d, v%d, v%d, v%d' % (t0, ml, ml + 1, ml + 2))
            a('v_max3_u32 v%d, v%d, v%d, v%d' % (t1, ml + 3, ml + 4, ml + 5))
            a('v_max3_u32 v%d, v%d, v%d, v%d' % (t0, t0, ml + 6, ml + 7))
            a('v_max_u32 v%d, v%d, v%d' % (t0, t0, t1))
            a('v_cmp_eq_u32 vcc, -1, v%d' % t0)
            a('s_cbranch_vccz L_mlok')
            n0 = a.vm_issued
            self.consumer_ml_loads(V, ' sc1')
            a.vm_issued = n0
            a('s_waitcnt vmcnt(0)')
            a('s_sub_u32 s%d, s%d, 1' % (S_CNT, S_CNT))
            a('s_cbranch_scc0 L_mlchk')
            a.label('L_mlok')
            self.consumer_weights(V)
            a('s_mov_b32 s%d, 0x%x' % (S_CNT, o.spin))
            a.label('L_ochk')
            a('s_waitcnt vmcnt(0)')
            ob = V['o']
            a('v_max3_u32 v%d, v%d, v%d, v%d' % (t0, ob, ob + 1, ob + 2))
            a('v_max3_u32 v%d, v%d, v%d, v%d' % (t1, ob + 3, ob + 4, ob + 5))
            a('v_max3_u32 v%d, v%d, v%d, v%d' % (t2, ob + 6, ob + 7, ob + 8))
            a('v_max3_u32 v%d, v%d, v%d, v%d' % (t0, t0, ob + 9, ob + 10))
            a('v_max3_u32 v%d, v%d, v%d, v%d' % (t1, t1, ob + 11, ob + 12))
            a('v_max3_u32 v%d, v%d, v%d, v%d' % (t2, t2, ob + 13, ob + 14))
            a('v_max3_u32 v%d, v%d, v%d, v%d' % (t0, t0, t1, ob + 15))
            a('v_max_u32 v%d, v%d, v%d' % (t0, t0, t2))
            a('v_cmp_eq_u32 vcc, -1, v%d' % t0)
            a('s_cbranch_vccz L_ook')
            a('s_mov_b64 exec, vcc')
            n0 = a.vm_issued
            self.consumer_o_loads(V, ' sc1')
            a.vm_issued = n0
            a('s_mov_b64 exec, -1')
            a('s_sub_u32 s%d, s%d, 1' % (S_CNT, S_CNT))
            a('s_cbranch_scc0 L_ochk')
            a('s_waitcnt vmcnt(0)')
            a.label('L_ook')
            self.stamp()
            self.consumer_final(V)
            self.stamp()
            a.label('L_done')
        self.dump_stamps(t0)
        a.label('L_end_%s' % label[-12:])
        a('s_endpgm')

    def combine_kernel(self, label):
        a = self.a
        a.flush_hazards()
        a.vm_issued = a.vm_done = 0
        V = dict(t0=4, t1=5, t2=6, co=7, cml=8, tq=9, tk=10, tv=11, cout=12, ml=16, o=24)
        a.label(label)
        a('s_load_dwordx16 s[4:19], s[0:1], 0')
        a('s_load_dwordx2 s[20:21], s[0:1], 64')
        a('s_cmp_ge_u32 s2, 64')
        a('s_cbranch_scc1 L_end_comb')
        a('v_lshrrev_b32 v1, 6, v0')
        a('v_and_b32 v0, 63, v0')
        a('v_readfirstlane_b32 s%d, v1' % S_Q)
        a('s_and_b32 s%d, s2, 7' % S_GROUP)
        a('s_lshr_b32 s%d, s2, 3' % S_HEAD)
        self.consts()
        self.consumer_setup_addr(V)
        a('s_mov_b32 s%d, 0x%x' % (SRD_W + 2, WS_RECORDS))
        a('s_mov_b32 s%d, 0x00020000' % (SRD_W + 3))
        a('s_waitcnt lgkmcnt(0)')
        a('s_mov_b32 s%d, s20' % SRD_W)
        a('s_mov_b32 s%d, s21' % (SRD_W + 1))
        a('s_load_dword s%d, s[14:15], 0' % S_MASKW)
        self.consumer_tree_loads(V)
        self.consumer_ml_loads(V, '')
        self.consumer_o_loads(V, '')
        a.wait_vm('tv', 'lgkmcnt(0)')
        self.consumer_tree_score(V)
        a.wait_vm('ml1')
        self.consumer_weights(V)
        a.wait_all()
        self.consumer_final(V)
        a.label('L_end_comb')
        a('s_endpgm')

    def build(self):
        o = self.o
        main = NAME + '_kernel'
        head = ['; tree-attention decode: split-KV flash decoding, generated by gen.py (own generator)']
        lds = max(LDS_TOTAL, o.lds)
        if o.mode == 'fused':
            head.append('; @launch grid=(256,1,1) block=(256,1,1) lds=%d' % lds)
            kernels = [(main, 256)]
        else:
            head.append('; @launch kernel=%s grid=(256,1,1) block=(256,1,1) lds=%d' % (main, lds))
            head.append('; @launch kernel=combine_kernel grid=(64,1,1) block=(256,1,1) lds=0')
            kernels = [(main, 256), ('combine_kernel', 40)]
        head += ['.amdgcn_target "amdgcn-amd-amdhsa--gfx950"', '.text']
        a = self.a
        for k, _ in kernels:
            a.raw('.globl %s' % k)
            a.raw('.p2align 8')
            a.raw('.type %s,@function' % k)
            if k == main:
                self.main_kernel(k)
            else:
                self.combine_kernel(k)
        tail = ['.section .rodata,"a"']
        for k, nv in kernels:
            tail += ['.p2align 6', '.amdhsa_kernel %s' % k,
                     '  .amdhsa_next_free_vgpr %d' % nv,
                     '  .amdhsa_next_free_sgpr 102',
                     '  .amdhsa_accum_offset %d' % nv,
                     '  .amdhsa_group_segment_fixed_size 0',
                     '  .amdhsa_kernarg_size 72',
                     '  .amdhsa_user_sgpr_count 2',
                     '  .amdhsa_user_sgpr_kernarg_segment_ptr 1',
                     '  .amdhsa_system_sgpr_workgroup_id_x 1',
                     '.end_amdhsa_kernel']
        return '\n'.join(head) + '\n' + a.text() + '\n'.join(tail) + '\n'


def main():
    p = argparse.ArgumentParser()
    p.add_argument('--mode', default='two')
    p.add_argument('--kload', default='direct')
    p.add_argument('--ntk', type=int, default=0)
    p.add_argument('--ntv', type=int, default=0)
    p.add_argument('--prof', type=int, default=0)
    p.add_argument('--lds', type=int, default=0)
    p.add_argument('--spin', type=int, default=200000)
    p.add_argument('-o', default='cdna_kernels/%s.s' % NAME)
    args = p.parse_args()
    g = Gen(args)
    txt = g.build()
    open(args.o, 'w').write(txt)
    print('wrote', args.o, 'max outstanding', g.a.maxout, 'lines', txt.count('\n'), file=sys.stderr)


if __name__ == '__main__':
    main()
```

```python
import argparse
import math
import struct
import sys

from asmlib import Asm

NAME = 'standalone__tree_speculative_verify_tree_attention_over_candidate_token_tree__decode'


def f32(x):
    return '0x%08x' % struct.unpack('<I', struct.pack('<f', x))[0]


C_SCALE = (128.0 ** -0.5) * math.log2(math.e)
NEG_BIG = -1.0e9 * math.log2(math.e)

ML_OFF = 1 << 20
PROF_OFF = 2 << 20
WS_RECORDS = 3 << 20

LDS_MAX = 0
LDS_L = 1024
LDS_ACC = 2048
LDS_TOTAL = 2048 + 4 * 4224

S_GROUP, S_SPLIT = 22, 23
SRD_K, SRD_V, SRD_W = 24, 28, 32
S_T0 = 36
S_OFF = 40
S_SEL_LO, S_SEL_HI = 48, 49
S_C = 50
S_MASKLO = 52
S_MASKW = 54
S_HEAD, S_Q = 55, 56
S_CNT = 57
S_NEGBIG = 58
S_FE = 59
S_TS = 64


def soff(t):
    return '0' if t == 0 else 's%d' % (S_OFF + t)


def vr(base, n=4):
    return 'v[%d:%d]' % (base, base + n - 1)


class Gen:
    def __init__(self, args):
        self.o = args
        self.a = Asm()
        self.nts = 0

    def stamp(self):
        if not self.o.prof or (self.o.prof == 3 and self.nts):
            return
        a = self.a
        a('s_memrealtime s[%d:%d]' % (S_TS + 2 * self.nts, S_TS + 2 * self.nts + 1))
        self.nts += 1

    def dump_stamps(self, vt):
        if not self.o.prof:
            return
        a = self.a
        a('s_waitcnt lgkmcnt(0)')
        if self.o.prof == 3:
            a('s_memrealtime s[36:37]')
            a('s_waitcnt lgkmcnt(0)')
            a('s_sub_u32 s38, s36, s%d' % S_TS)
            a('s_min_u32 s38, s38, 10000')
            a('s_mul_i32 s38, s38, 10')
            a('s_add_u32 s38, s38, s36')
            a.label('L_stretch')
            a('s_memrealtime s[36:37]')
            a('s_waitcnt lgkmcnt(0)')
            a('s_sub_u32 s39, s36, s38')
            a('s_cmp_lt_i32 s39, 0')
            a('s_cbranch_scc1 L_stretch')
            return
        if self.o.prof == 2:
            a('s_mov_b64 exec, 1')
            a('v_mov_b32 v%d, 0' % vt)
            a('s_not_b32 s36, s%d' % S_TS)
            a('v_mov_b32 v%d, s36' % (vt + 1))
            a('global_atomic_umax v%d, v%d, s[18:19] offset:4' % (vt, vt + 1), count=False)
            a('s_waitcnt vmcnt(0)')
            slots = [2, 3, 4, 5, 6, 7, 9, 10, 11, 12, 13, 14, 15]
            for i in range(self.nts):
                if i >= 8:
                    a('s_cmp_lg_u32 s3, 0')
                    a('s_cbranch_scc1 L_nost')
                a('v_mov_b32 v%d, s%d' % (vt + 1, S_TS + 2 * i))
                a('global_atomic_umax v%d, v%d, s[18:19] offset:%d' % (vt, vt + 1, 4 * slots[i]), count=False)
                a('s_waitcnt vmcnt(0)')
            a.label('L_nost')
            return
        a('s_lshl_b32 s36, s2, 2')
        a('s_add_u32 s36, s36, s3')
        a('s_lshl_b32 s36, s36, 6')
        a('s_add_u32 s36, s36, 0x%x' % PROF_OFF)
        a('s_mov_b64 exec, 1')
        a('v_mov_b32 v%d, s36' % vt)
        for i in range(self.nts):
            a('v_mov_b32 v%d, s%d' % (vt + 1, S_TS + 2 * i))
            a('buffer_store_dword v%d, v%d, s[%d:%d], 0 offen offset:%d' % (vt + 1, vt, SRD_W, SRD_W + 3, 4 * i),
              count=False)
            a('s_waitcnt vmcnt(0)')

    def consumer_setup_addr(self, V):
        a = self.a
        a('s_lshl_b32 s36, s%d, 17' % S_GROUP)
        a('s_lshl_b32 s37, s%d, 10' % S_Q)
        a('s_lshl_b32 s38, s%d, 7' % S_HEAD)
        a('s_add_u32 s36, s36, s37')
        a('s_add_u32 s36, s36, s38')
        a('v_lshrrev_b32 v%d, 3, v0' % V['t0'])
        a('v_and_b32 v%d, 7, v0' % V['t1'])
        a('v_lshlrev_b32 v%d, 14, v%d' % (V['co'], V['t0']))
        a('v_lshl_add_u32 v%d, v%d, 4, v%d' % (V['co'], V['t1'], V['co']))
        a('v_add_u32 v%d, s36, v%d' % (V['co'], V['co']))
        a('s_lshl_b32 s37, s%d, 3' % S_GROUP)
        a('s_add_u32 s37, s37, s%d' % S_HEAD)
        a('s_lshl_b32 s37, s37, 8')
        a('s_add_u32 s38, s37, 0x%x' % ML_OFF)
        a('v_lshlrev_b32 v%d, 5, v%d' % (V['cml'], V['t0']))
        a('v_add_u32 v%d, s38, v%d' % (V['cml'], V['cml']))
        a('v_lshlrev_b32 v%d, 2, v0' % V['t2'])
        a('v_add_u32 v%d, s37, v%d' % (V['tq'], V['t2']))
        a('s_lshl_b32 s38, s%d, 8' % S_GROUP)
        a('v_add_u32 v%d, s38, v%d' % (V['tk'], V['t2']))
        a('v_bfe_u32 v%d, v0, 4, 1' % V['t0'])
        a('v_bfe_u32 v%d, v0, 5, 1' % V['t2'])
        a('v_lshl_add_u32 v%d, v%d, 1, v%d' % (V['t0'], V['t0'], V['t2']))
        a('v_lshl_add_u32 v%d, v%d, 3, v%d' % (V['t0'], V['t0'], V['t1']))
        a('s_lshl_b32 s39, s%d, 5' % S_Q)
        a('v_add_u32 v%d, s39, v%d' % (V['t0'], V['t0']))
        a('v_lshlrev_b32 v%d, 1, v%d' % (V['t0'], V['t0']))
        a('v_add_u32 v%d, s37, v%d' % (V['cout'], V['t0']))
        a('v_add_u32 v%d, s38, v%d' % (V['tv'], V['t0']))

    def consumer_tree_loads(self, V):
        a = self.a
        a('global_load_dword v%d, v%d, s[4:5]' % (V['tq'], V['tq']), tag='tq')
        a('global_load_dword v%d, v%d, s[10:11]' % (V['tk'], V['tk']), tag='tk')
        a('global_load_ushort v%d, v%d, s[12:13]' % (V['tv'], V['tv']), tag='tv')

    def consumer_tree_score(self, V):
        a = self.a
        t0, t1, t2 = V['t0'], V['t1'], V['t2']
        tq, tk = V['tq'], V['tk']
        a('v_lshlrev_b32 v%d, 16, v%d' % (t0, tq))
        a('v_lshlrev_b32 v%d, 16, v%d' % (t1, tk))
        a('v_and_b32 v%d, 0xffff0000, v%d' % (tq, tq))
        a('v_and_b32 v%d, 0xffff0000, v%d' % (tk, tk))
        a('v_mul_f32 v%d, v%d, v%d' % (t0, t0, t1))
        a('v_fmac_f32 v%d, v%d, v%d' % (t0, tq, tk))
        a('v_lshlrev_b32 v%d, 16, v%d' % (V['tv'], V['tv']))
        for sh in (8, 4, 2, 1):
            a('v_add_f32_dpp v%d, v%d, v%d row_ror:%d row_mask:0xf bank_mask:0xf' % (t0, t0, t0, sh))
        a('v_mov_b32 v%d, v%d' % (t1, t0))
        a('v_permlane16_swap_b32 v%d, v%d' % (t0, t1))
        a('v_add_f32 v%d, v%d, v%d' % (t0, t0, t1))
        a('v_mov_b32 v%d, v%d' % (t1, t0))
        a('v_permlane32_swap_b32 v%d, v%d' % (t0, t1))
        a('v_add_f32 v%d, v%d, v%d' % (t0, t0, t1))
        a('s_lshr_b32 s36, s%d, 2' % S_GROUP)
        a('s_lshl_b32 s36, s36, 4')
        a('s_lshr_b32 s36, s%d, s36' % S_MASKW)
        a('s_lshl_b32 s36, s36, 16')
        a('v_mov_b32 v%d, s36' % t1)
        a('v_sub_f32 v%d, 1.0, v%d' % (t1, t1))
        a('v_mul_f32 v%d, s%d, v%d' % (t1, S_NEGBIG, t1))
        a('v_fma_f32 v%d, v%d, s%d, v%d' % (tq, t0, S_C, t1))

    def consumer_weights(self, V):
        a = self.a
        ml = V['ml']
        t0, t1, t2 = V['t0'], V['t1'], V['t2']
        a('v_max3_f32 v%d, v%d, v%d, v%d' % (t0, ml, ml + 2, ml + 4))
        a('v_max3_f32 v%d, v%d, v%d, v%d' % (t0, t0, ml + 6, V['tq']))
        a('v_max_f32_dpp v%d, v%d, v%d row_ror:8 row_mask:0xf bank_mask:0xf' % (t0, t0, t0))
        a('v_mov_b32 v%d, v%d' % (t1, t0))
        a('v_permlane16_swap_b32 v%d, v%d' % (t0, t1))
        a('v_max_f32 v%d, v%d, v%d' % (t0, t0, t1))
        a('v_mov_b32 v%d, v%d' % (t1, t0))
        a('v_permlane32_swap_b32 v%d, v%d' % (t0, t1))
        a('v_max_f32 v%d, v%d, v%d' % (t0, t0, t1))
        for i in range(4):
            a('v_sub_f32 v%d, v%d, v%d' % (ml + 2 * i, ml + 2 * i, t0))
        a('v_sub_f32 v%d, v%d, v%d' % (V['tq'], V['tq'], t0))
        for i in range(4):
            a('v_exp_f32 v%d, v%d' % (ml + 2 * i, ml + 2 * i))
        a('v_exp_f32 v%d, v%d' % (V['tq'], V['tq']))
        a('v_mul_f32 v%d, v%d, v%d' % (t0, ml, ml + 1))
        for i in range(1, 4):
            a('v_fmac_f32 v%d, v%d, v%d' % (t0, ml + 2 * i, ml + 2 * i + 1))
        a('v_add_f32_dpp v%d, v%d, v%d row_ror:8 row_mask:0xf bank_mask:0xf' % (t0, t0, t0))
        a('v_mov_b32 v%d, v%d' % (t1, t0))
        a('v_permlane16_swap_b32 v%d, v%d' % (t0, t1))
        a('v_add_f32 v%d, v%d, v%d' % (t0, t0, t1))
        a('v_mov_b32 v%d, v%d' % (t1, t0))
        a('v_permlane32_swap_b32 v%d, v%d' % (t0, t1))
        a('v_add_f32 v%d, v%d, v%d' % (t0, t0, t1))
        a('v_add_f32 v%d, v%d, v%d' % (t0, t0, V['tq']))
        a('v_rcp_f32 v%d, v%d' % (t0, t0))
        a('v_mul_f32 v%d, v%d, v%d' % (V['tv'], V['tv'], V['tq']))
        for i in range(4):
            a('v_mul_f32 v%d, v%d, v%d' % (ml + 2 * i, ml + 2 * i, t0))
        a('v_mul_f32 v%d, v%d, v%d' % (V['tv'], V['tv'], t0))

    def consumer_o_loads(self, V, sc):
        a = self.a
        for i in range(4):
            a('buffer_load_dwordx4 %s, v%d, s[%d:%d], %s offen%s' % (
                vr(V['o'] + 4 * i), V['co'], SRD_W, SRD_W + 3, soff(i), sc), tag='o%d' % i)

    def consumer_ml_loads(self, V, sc):
        a = self.a
        for i in range(2):
            a('buffer_load_dwordx4 %s, v%d, s[%d:%d], 0 offen offset:%d%s' % (
                vr(V['ml'] + 4 * i), V['cml'], SRD_W, SRD_W + 3, 16 * i, sc), tag='ml%d' % i)

    def consumer_final(self, V):
        a = self.a
        o, ml = V['o'], V['ml']
        for r in range(4):
            a('v_mul_f32 v%d, v%d, v%d' % (o + r, o + r, ml))
        for i in range(1, 4):
            for r in range(4):
                a('v_fmac_f32 v%d, v%d, v%d' % (o + r, o + 4 * i + r, ml + 2 * i))
        a('v_permlane32_swap_b32 v%d, v%d' % (o, o + 1))
        a('v_permlane32_swap_b32 v%d, v%d' % (o + 2, o + 3))
        a('v_add_f32 v%d, v%d, v%d' % (o, o, o + 1))
        a('v_add_f32 v%d, v%d, v%d' % (o + 2, o + 2, o + 3))
        a('v_permlane16_swap_b32 v%d, v%d' % (o, o + 2))
        a('v_add_f32 v%d, v%d, v%d' % (o, o, o + 2))
        a('v_add_f32_dpp v%d, v%d, v%d row_ror:8 row_mask:0xf bank_mask:0xf' % (o, o, o))
        a('v_add_f32 v%d, v%d, v%d' % (o, o, V['tv']))
        a('v_cvt_pk_bf16_f32 v%d, v%d, v%d' % (o, o, o))
        a('s_mov_b64 exec, s[%d:%d]' % (S_MASKLO, S_MASKLO + 1))
        a('global_store_short v%d, v%d, s[16:17]' % (V['cout'], o))

    def consts(self):
        a = self.a
        for t in range(1, 8):
            a('s_mov_b32 s%d, 0x%x' % (S_OFF + t, t * 4096))
        a('s_mov_b32 s%d, 0x00ff00ff' % S_MASKLO)
        a('s_mov_b32 s%d, 0x00ff00ff' % (S_MASKLO + 1))
        a('s_mov_b32 s%d, %s' % (S_C, f32(C_SCALE)))
        a('s_mov_b32 s%d, %s' % (S_NEGBIG, f32(NEG_BIG)))

    def main_kernel(self, label):
        o, a = self.o, self.a
        fused = o.mode == 'fused'
        ntk = ' nt' if o.ntk else ''
        ntv = ' nt' if o.ntv else ''
        VK, VV, VQ = 1, 2, 3
        V = dict(t0=4, t1=5, t2=6, co=7, cml=56, tq=57, tk=58, tv=59, cout=60)
        VLDS = 61
        VLW = 62
        VLR = 63
        Q = 8
        ACC = 8
        S = 24
        VB = [64, 96, 128, 160]
        K = 128
        PLO, PHI, TMP = 192, 208, 224
        V['ml'] = 24
        V['o'] = 32
        VSENT = 48

        a.label(label)
        self.stamp()
        a('s_load_dwordx16 s[4:19], s[0:1], 0')
        a('s_load_dwordx2 s[20:21], s[0:1], 64')
        a('s_cmp_ge_u32 s2, 256')
        a('s_cbranch_scc1 L_end_%s' % label[-12:])
        a('v_lshrrev_b32 v1, 6, v0')
        a('v_and_b32 v0, 63, v0')
        a('v_readfirstlane_b32 s3, v1')
        a('s_and_b32 s%d, s2, 7' % S_GROUP)
        a('s_lshr_b32 s%d, s2, 3' % S_SPLIT)
        a('s_lshl_b32 s36, s%d, 22' % S_GROUP)
        a('s_lshl_b32 s37, s%d, 17' % S_SPLIT)
        a('s_add_u32 s36, s36, s37')
        a('v_lshrrev_b32 v%d, 4, v0' % V['t0'])
        a('v_lshlrev_b32 v%d, 4, v0' % VV)
        a('s_lshl_b32 s37, s3, 15')
        a('s_add_u32 s36, s36, s37')
        if o.kload == 'direct':
            a('v_and_b32 v%d, 3, v0' % V['t1'])
            a('v_bfe_u32 v%d, v0, 2, 2' % V['t2'])
            a('v_lshl_add_u32 v%d, v%d, 2, v%d' % (V['t1'], V['t1'], V['t2']))
            a('v_lshlrev_b32 v%d, 8, v%d' % (VK, V['t1']))
            a('v_lshl_add_u32 v%d, v%d, 4, v%d' % (VK, V['t0'], VK))
        a('v_and_b32 v%d, 7, v0' % V['t1'])
        a('v_lshlrev_b32 v%d, 8, v%d' % (VQ, V['t1']))
        a('v_lshl_add_u32 v%d, v%d, 4, v%d' % (VQ, V['t0'], VQ))
        a('s_lshl_b32 s37, s%d, 11' % S_GROUP)
        a('v_add_u32 v%d, s37, v%d' % (VQ, VQ))
        for t in range(1, 8):
            a('s_mov_b32 s%d, 0x%x' % (S_OFF + t, t * 4096))
        for srd in (SRD_K, SRD_V):
            a('s_mov_b32 s%d, 0x8000' % (srd + 2))
            a('s_mov_b32 s%d, 0x00020000' % (srd + 3))
        a('s_waitcnt lgkmcnt(0)')
        a('s_add_u32 s%d, s6, s36' % SRD_K)
        a('s_addc_u32 s%d, s7, 0' % (SRD_K + 1))
        a('s_add_u32 s%d, s8, s36' % SRD_V)
        a('s_addc_u32 s%d, s9, 0' % (SRD_V + 1))
        self.stamp()

        def kload(t):
            for j in range(4):
                if o.kload == 'direct':
                    a('buffer_load_dwordx4 %s, v%d, s[%d:%d], %s offen offset:%d%s' % (
                        vr(K + 16 * t + 4 * j), VK, SRD_K, SRD_K + 3, soff(t), 64 * j, ntk), tag='k%d_%d' % (t, j))
                else:
                    a('buffer_load_dwordx4 %s, v%d, s[%d:%d], %s offen offset:%d%s' % (
                        vr(K + 16 * t + 4 * j), VV, SRD_K, SRD_K + 3, soff(t), 1024 * j, ntk), tag='k%d_%d' % (t, j))

        def vload(blk, i):
            a('buffer_load_dwordx4 %s, v%d, s[%d:%d], %s offen offset:%d%s' % (
                vr(VB[blk] + 4 * i), VV, SRD_V, SRD_V + 3, soff(2 * blk + (i >> 2)), 1024 * (i & 3), ntv),
              tag='v%d_%d' % (blk, i))

        kload(0)
        for j in range(4):
            a('global_load_dwordx4 %s, v%d, s[4:5] offset:%d' % (vr(Q + 4 * j), VQ, 64 * j), tag='q%d' % j)
        for t in range(1, 8):
            kload(t)
        if not fused:
            for blk in range(2):
                for i in range(8):
                    vload(blk, i)
            self.stamp()

        a('s_mov_b32 s%d, s20' % SRD_W)
        a('s_mov_b32 s%d, s21' % (SRD_W + 1))
        a('s_mov_b32 s%d, 0x%x' % (SRD_W + 2, WS_RECORDS))
        a('s_mov_b32 s%d, 0x00020000' % (SRD_W + 3))
        a('s_mov_b32 s%d, 0x05040100' % S_SEL_LO)
        a('s_mov_b32 s%d, 0x07060302' % S_SEL_HI)
        a('s_mov_b32 s%d, 0x00ff00ff' % S_MASKLO)
        a('s_mov_b32 s%d, 0x00ff00ff' % (S_MASKLO + 1))
        a('s_mov_b32 s%d, %s' % (S_C, f32(C_SCALE)))
        a('s_mov_b32 s%d, 0xfffffffe' % S_FE)
        VPS, VPM = VK, VQ
        a('s_lshl_b32 s36, s%d, 17' % S_GROUP)
        a('s_lshl_b32 s37, s%d, 12' % S_SPLIT)
        a('s_lshl_b32 s38, s3, 10')
        a('s_add_u32 s36, s36, s37')
        a('s_add_u32 s36, s36, s38')
        a('v_add_u32 v%d, s36, v%d' % (VPS, VV))
        a('s_lshl_b32 s36, s%d, 11' % S_GROUP)
        a('s_lshl_b32 s37, s%d, 3' % S_SPLIT)
        a('s_add_u32 s36, s36, s37')
        a('s_add_u32 s36, s36, 0x%x' % ML_OFF)
        a('v_and_b32 v%d, 7, v0' % V['t1'])
        a('v_lshlrev_b32 v%d, 8, v%d' % (VPM, V['t1']))
        a('v_add_u32 v%d, s36, v%d' % (VPM, VPM))
        a('s_lshl_b32 s36, s3, 1')
        a('s_lshl_b64 s[60:61], 3, s36')
        if fused:
            for r in range(4):
                a('v_mov_b32 v%d, -1' % (VSENT + r))
            a('buffer_store_dwordx4 %s, v%d, s[%d:%d], 0 offen sc1' % (vr(VSENT), VPS, SRD_W, SRD_W + 3), tag='clr0')
            a('s_mov_b64 exec, s[60:61]')
            a('buffer_store_dwordx2 %s, v%d, s[%d:%d], 0 offen sc1' % (vr(VSENT, 2), VPM, SRD_W, SRD_W + 3),
              tag='clr1')
            a('s_mov_b64 exec, -1')
            a('s_load_dword s%d, s[14:15], 0' % S_MASKW)
            a('s_mov_b32 s%d, %s' % (S_NEGBIG, f32(NEG_BIG)))
            a('s_lshr_b32 s%d, s%d, 2' % (S_HEAD, S_SPLIT))
            a('s_and_b32 s%d, s%d, 3' % (S_Q, S_SPLIT))
            self.consumer_setup_addr(V)
            self.consumer_tree_loads(V)
            for blk in range(2):
                for i in range(8):
                    vload(blk, i)
            self.stamp()
        a('s_lshl_b32 s36, s3, 2')
        a('v_add_u32 v%d, s36, v%d' % (VLDS, VV))
        a('s_mul_i32 s36, s3, 4224')
        a('v_add_u32 v%d, s36, v%d' % (VLW, VV))
        a('v_and_b32 v%d, 3, v0' % V['t0'])
        a('v_mul_u32_u24 v%d, 1056, v%d' % (VLR, V['t0']))
        a('v_bfe_u32 v%d, v0, 2, 1' % V['t0'])
        a('v_lshl_add_u32 v%d, v%d, 7, v%d' % (VLR, V['t0'], VLR))
        a('v_lshrrev_b32 v%d, 3, v0' % V['t0'])
        a('v_lshl_add_u32 v%d, v%d, 4, v%d' % (VLR, V['t0'], VLR))
        a('s_lshl_b32 s36, s3, 8')
        a('v_add_u32 v%d, s36, v%d' % (VLR, VLR))

        for t in range(8):
            a.wait_vm('q3' if t == 0 else 'k%d_3' % t)
            if t == 0:
                self.stamp()
            for j in range(4):
                a('v_mfma_f32_16x16x32_bf16 %s, %s, %s, %s' % (
                    vr(S + 4 * t), vr(K + 16 * t + 4 * j), vr(Q + 4 * j), '0' if j == 0 else vr(S + 4 * t)))
            if t < 4:
                for i in range(4):
                    vload(2 + (t >> 1), 4 * (t & 1) + i)
        self.stamp()
        t0, t1, t2 = V['t0'], V['t1'], V['t2']
        a('v_max3_f32 v%d, v%d, v%d, v%d' % (t0, S, S + 1, S + 2))
        a('v_max3_f32 v%d, v%d, v%d, v%d' % (t1, S + 3, S + 4, S + 5))
        idx = 6
        flip = 0
        while idx < 32:
            d = (t0, t1)[flip]
            a('v_max3_f32 v%d, v%d, v%d, v%d' % (d, d, S + idx, S + idx + 1))
            idx += 2
            flip ^= 1
        a('v_max_f32 v%d, v%d, v%d' % (t0, t0, t1))
        a('v_mov_b32 v%d, v%d' % (t1, t0))
        a('v_permlane16_swap_b32 v%d, v%d' % (t0, t1))
        a('v_max_f32 v%d, v%d, v%d' % (t0, t0, t1))
        a('v_mov_b32 v%d, v%d' % (t1, t0))
        a('v_permlane32_swap_b32 v%d, v%d' % (t0, t1))
        a('v_max_f32 v%d, v%d, v%d' % (t0, t0, t1))
        a('ds_write_b32 v%d, v%d offset:%d' % (VLDS, t0, LDS_MAX))
        if fused:
            a.wait_vm('tv', 'lgkmcnt(0)')
        else:
            a('s_waitcnt lgkmcnt(0)')
        a('s_barrier')
        a('ds_read_b128 %s, v%d offset:%d' % (vr(TMP), VV, LDS_MAX))
        if fused:
            a('s_cmp_lg_u32 s3, 1')
            a('s_cbranch_scc1 L_noarr')
            a('s_mov_b64 exec, 1')
            a('s_lshl_b32 s36, s%d, 5' % S_GROUP)
            a('v_mov_b32 v%d, s36' % t1)
            a('v_mov_b32 v%d, 1' % t2)
            a('global_atomic_add v%d, v%d, s[18:19]' % (t1, t2), count=False)
            a('s_mov_b64 exec, -1')
            a.label('L_noarr')
        for r in range(4):
            a('v_mov_b32 v%d, 0x3f803f80' % (TMP + 4 + r))
        a('s_waitcnt lgkmcnt(0)')
        a('v_max3_f32 v%d, v%d, v%d, v%d' % (t0, TMP, TMP + 1, TMP + 2))
        a('v_max_f32 v%d, v%d, v%d' % (t0, t0, TMP + 3))
        MC = TMP + 8
        a('v_mul_f32 v%d, s%d, v%d' % (MC, S_C, t0))
        for i in range(32):
            a('v_fma_f32 v%d, v%d, s%d, -v%d' % (S + i, S + i, S_C, MC))
        for i in range(32):
            a('v_exp_f32 v%d, v%d' % (S + i, S + i))
        for i in range(16):
            a('v_cvt_pk_bf16_f32 v%d, v%d, v%d' % (S + 2 * i, S + 2 * i, S + 2 * i + 1))
        for i in range(16):
            a('v_cndmask_b32 v%d, 0, v%d, s[%d:%d]' % (PLO + i, S + 2 * i, S_MASKLO, S_MASKLO + 1))
        for b in range(4):
            a('v_mfma_f32_16x16x32_bf16 %s, %s, %s, %s' % (
                vr(TMP + 12), vr(TMP + 4), vr(PLO + 4 * b), '0' if b == 0 else vr(TMP + 12)))
        for i in range(16):
            a('v_cndmask_b32 v%d, v%d, 0, s[%d:%d]' % (PHI + i, S + 2 * i, S_MASKLO, S_MASKLO + 1))
        a('ds_write_b32 v%d, v%d offset:%d' % (VLDS, TMP + 12, LDS_L))
        a('s_waitcnt lgkmcnt(0)')
        a('s_barrier')
        a('ds_read_b128 %s, v%d offset:%d' % (vr(TMP), VV, LDS_L))
        if fused:
            self.consumer_tree_score(V)
        a('s_waitcnt lgkmcnt(0)')
        a('v_add_f32 v%d, v%d, v%d' % (TMP, TMP, TMP + 1))
        a('v_add_f32 v%d, v%d, v%d' % (TMP + 2, TMP + 2, TMP + 3))
        a('v_add_f32 v%d, v%d, v%d' % (MC + 1, TMP, TMP + 2))
        if fused:
            a('v_min_u32 v%d, s%d, v%d' % (MC, S_FE, MC))
            a('v_min_u32 v%d, s%d, v%d' % (MC + 1, S_FE, MC + 1))
        a('s_mov_b64 exec, s[60:61]')
        a('buffer_store_dwordx2 %s, v%d, s[%d:%d], 0 offen%s' % (
            vr(MC, 2), VPM, SRD_W, SRD_W + 3, ' sc1' if fused else ''), tag='mlst')
        a('s_mov_b64 exec, -1')
        self.stamp()

        for blk in range(4):
            if fused and blk == 3:
                a('s_cmp_lg_u32 s3, 0')
                a('s_cbranch_scc1 L_nocnt')
                a('s_lshl_b32 s36, s%d, 5' % S_GROUP)
                a('v_mov_b32 v%d, s36' % V['tk'])
                a('global_load_dword v%d, v%d, s[18:19] sc1' % (V['tk'], V['tk']), count=False)
                a.label('L_nocnt')
            for k in range(4):
                if blk == 3 or k == 0 or k == 2:
                    kk = k if blk == 3 else k + 1
                    a.wait_vm('v%d_%d' % (blk, 2 * kk + 1))
                for e in range(8):
                    x = VB[blk] + 4 * (2 * k) + (e >> 1)
                    y = VB[blk] + 4 * (2 * k + 1) + (e >> 1)
                    a('v_perm_b32 v%d, v%d, v%d, s%d' % (TMP + 4 * e + k, y, x, S_SEL_HI if e & 1 else S_SEL_LO))
            for e in range(8):
                ep = e & 3
                first = blk == 0 and e < 4
                a('v_mfma_f32_16x16x32_bf16 %s, %s, %s, %s' % (
                    vr(ACC + 4 * ep), vr(TMP + 4 * e), vr((PLO if e < 4 else PHI) + 4 * blk),
                    '0' if first else vr(ACC + 4 * ep)))
            if blk == 3:
                self.stamp()
        for ep in range(4):
            a('ds_write_b128 v%d, %s offset:%d' % (VLW, vr(ACC + 4 * ep), LDS_ACC + 1056 * ep))
        if fused:
            a('s_cmp_lg_u32 s3, 0')
            a('s_cbranch_scc1 L_noml')
            a('s_mov_b32 s%d, 0x%x' % (S_CNT, o.spin))
            a.label('L_cnt')
            a('s_waitcnt vmcnt(0)')
            a('v_readfirstlane_b32 s36, v%d' % V['tk'])
            a('s_cmp_ge_u32 s36, 32')
            a('s_cbranch_scc1 L_cntok')
            a('s_lshl_b32 s36, s%d, 5' % S_GROUP)
            a('v_mov_b32 v%d, s36' % V['tk'])
            a('global_load_dword v%d, v%d, s[18:19] sc1' % (V['tk'], V['tk']), count=False)
            a('s_sub_u32 s%d, s%d, 1' % (S_CNT, S_CNT))
            a('s_cbranch_scc0 L_cnt')
            a.label('L_cntok')
            a.vm_done = a.vm_issued
            n0 = a.vm_issued
            self.consumer_ml_loads(V, ' sc1')
            a.vm_issued = n0
            a.label('L_noml')
        a('s_waitcnt lgkmcnt(0)')
        a('s_barrier')
        R = TMP
        for w in range(4):
            a('ds_read_b128 %s, v%d offset:%d' % (vr(R + 4 * w), VLR, LDS_ACC + 4224 * w))
        a('s_waitcnt lgkmcnt(2)')
        for r in range(4):
            a('v_add_f32 v%d, v%d, v%d' % (R + r, R + r, R + 4 + r))
        a('s_waitcnt lgkmcnt(0)')
        for r in range(4):
            a('v_add_f32 v%d, v%d, v%d' % (R + 8 + r, R + 8 + r, R + 12 + r))
        for r in range(4):
            a('v_add_f32 v%d, v%d, v%d' % (R + r, R + r, R + 8 + r))
        if fused:
            for r in range(4):
                a('v_min_u32 v%d, s%d, v%d' % (R + r, S_FE, R + r))
        a('buffer_store_dwordx4 %s, v%d, s[%d:%d], 0 offen%s' % (
            vr(R), VPS, SRD_W, SRD_W + 3, ' sc1' if fused else ''))
        self.stamp()
        if fused:
            a('s_cmp_lg_u32 s3, 0')
            a('s_cbranch_scc1 L_done')
            self.consumer_o_loads(V, ' sc1')
            a('s_mov_b32 s%d, 0x%x' % (S_CNT, o.spin))
            a('s_waitcnt vmcnt(5)')
            a.label('L_mlchk')
            ml = V['ml']
            a('v_max3_u32 v%d, v%d, v%d, v%d' % (t0, ml, ml + 1, ml + 2))
            a('v_max3_u32 v%d, v%d, v%d, v%d' % (t1, ml + 3, ml + 4, ml + 5))
            a('v_max3_u32 v%d, v%d, v%d, v%d' % (t0, t0, ml + 6, ml + 7))
            a('v_max_u32 v%d, v%d, v%d' % (t0, t0, t1))
            a('v_cmp_eq_u32 vcc, -1, v%d' % t0)
            a('s_cbranch_vccz L_mlok')
            n0 = a.vm_issued
            self.consumer_ml_loads(V, ' sc1')
            a.vm_issued = n0
            a('s_waitcnt vmcnt(0)')
            a('s_sub_u32 s%d, s%d, 1' % (S_CNT, S_CNT))
            a('s_cbranch_scc0 L_mlchk')
            a.label('L_mlok')
            self.consumer_weights(V)
            a('s_mov_b32 s%d, 0x%x' % (S_CNT, o.spin))
            a.label('L_ochk')
            a('s_waitcnt vmcnt(0)')
            ob = V['o']
            a('v_max3_u32 v%d, v%d, v%d, v%d' % (t0, ob, ob + 1, ob + 2))
            a('v_max3_u32 v%d, v%d, v%d, v%d' % (t1, ob + 3, ob + 4, ob + 5))
            a('v_max3_u32 v%d, v%d, v%d, v%d' % (t2, ob + 6, ob + 7, ob + 8))
            a('v_max3_u32 v%d, v%d, v%d, v%d' % (t0, t0, ob + 9, ob + 10))
            a('v_max3_u32 v%d, v%d, v%d, v%d' % (t1, t1, ob + 11, ob + 12))
            a('v_max3_u32 v%d, v%d, v%d, v%d' % (t2, t2, ob + 13, ob + 14))
            a('v_max3_u32 v%d, v%d, v%d, v%d' % (t0, t0, t1, ob + 15))
            a('v_max_u32 v%d, v%d, v%d' % (t0, t0, t2))
            a('v_cmp_eq_u32 vcc, -1, v%d' % t0)
            a('s_cbranch_vccz L_ook')
            a('s_mov_b64 exec, vcc')
            n0 = a.vm_issued
            self.consumer_o_loads(V, ' sc1')
            a.vm_issued = n0
            a('s_mov_b64 exec, -1')
            a('s_sub_u32 s%d, s%d, 1' % (S_CNT, S_CNT))
            a('s_cbranch_scc0 L_ochk')
            a('s_waitcnt vmcnt(0)')
            a.label('L_ook')
            self.stamp()
            self.consumer_final(V)
            self.stamp()
            a.label('L_done')
        self.dump_stamps(t0)
        a.label('L_end_%s' % label[-12:])
        a('s_endpgm')

    def combine_kernel(self, label):
        a = self.a
        a.flush_hazards()
        a.vm_issued = a.vm_done = 0
        V = dict(t0=4, t1=5, t2=6, co=7, cml=8, tq=9, tk=10, tv=11, cout=12, ml=16, o=24)
        a.label(label)
        a('s_load_dwordx16 s[4:19], s[0:1], 0')
        a('s_load_dwordx2 s[20:21], s[0:1], 64')
        a('s_cmp_ge_u32 s2, 64')
        a('s_cbranch_scc1 L_end_comb')
        a('v_lshrrev_b32 v1, 6, v0')
        a('v_and_b32 v0, 63, v0')
        a('v_readfirstlane_b32 s%d, v1' % S_Q)
        a('s_and_b32 s%d, s2, 7' % S_GROUP)
        a('s_lshr_b32 s%d, s2, 3' % S_HEAD)
        self.consts()
        self.consumer_setup_addr(V)
        a('s_mov_b32 s%d, 0x%x' % (SRD_W + 2, WS_RECORDS))
        a('s_mov_b32 s%d, 0x00020000' % (SRD_W + 3))
        a('s_waitcnt lgkmcnt(0)')
        a('s_mov_b32 s%d, s20' % SRD_W)
        a('s_mov_b32 s%d, s21' % (SRD_W + 1))
        a('s_load_dword s%d, s[14:15], 0' % S_MASKW)
        self.consumer_tree_loads(V)
        self.consumer_ml_loads(V, '')
        self.consumer_o_loads(V, '')
        a.wait_vm('tv', 'lgkmcnt(0)')
        self.consumer_tree_score(V)
        a.wait_vm('ml1')
        self.consumer_weights(V)
        a.wait_all()
        self.consumer_final(V)
        a.label('L_end_comb')
        a('s_endpgm')

    def build(self):
        o = self.o
        main = NAME + '_kernel'
        head = ['; tree-attention decode: split-KV flash decoding, generated by gen.py (own generator)']
        lds = max(LDS_TOTAL, o.lds)
        if o.mode == 'fused':
            head.append('; @launch grid=(256,1,1) block=(256,1,1) lds=%d' % lds)
            kernels = [(main, 256)]
        else:
            head.append('; @launch kernel=%s grid=(256,1,1) block=(256,1,1) lds=%d' % (main, lds))
            head.append('; @launch kernel=combine_kernel grid=(64,1,1) block=(256,1,1) lds=0')
            kernels = [(main, 256), ('combine_kernel', 40)]
        head += ['.amdgcn_target "amdgcn-amd-amdhsa--gfx950"', '.text']
        a = self.a
        for k, _ in kernels:
            a.raw('.globl %s' % k)
            a.raw('.p2align 8')
            a.raw('.type %s,@function' % k)
            if k == main:
                self.main_kernel(k)
            else:
                self.combine_kernel(k)
        tail = ['.section .rodata,"a"']
        for k, nv in kernels:
            tail += ['.p2align 6', '.amdhsa_kernel %s' % k,
                     '  .amdhsa_next_free_vgpr %d' % nv,
                     '  .amdhsa_next_free_sgpr 102',
                     '  .amdhsa_accum_offset %d' % nv,
                     '  .amdhsa_group_segment_fixed_size 0',
                     '  .amdhsa_kernarg_size 72',
                     '  .amdhsa_user_sgpr_count 2',
                     '  .amdhsa_user_sgpr_kernarg_segment_ptr 1',
                     '  .amdhsa_system_sgpr_workgroup_id_x 1',
                     '.end_amdhsa_kernel']
        return '\n'.join(head) + '\n' + a.text() + '\n'.join(tail) + '\n'


def main():
    p = argparse.ArgumentParser()
    p.add_argument('--mode', default='two')
    p.add_argument('--kload', default='direct')
    p.add_argument('--ntk', type=int, default=0)
    p.add_argument('--ntv', type=int, default=0)
    p.add_argument('--prof', type=int, default=0)
    p.add_argument('--lds', type=int, default=0)
    p.add_argument('--spin', type=int, default=200000)
    p.add_argument('-o', default='cdna_kernels/%s.s' % NAME)
    args = p.parse_args()
    g = Gen(args)
    txt = g.build()
    open(args.o, 'w').write(txt)
    print('wrote', args.o, 'max outstanding', g.a.maxout, 'lines', txt.count('\n'), file=sys.stderr)


if __name__ == '__main__':
    main()
```

```python
import argparse
import math
import struct
import sys

from asmlib import Asm

NAME = 'standalone__tree_speculative_verify_tree_attention_over_candidate_token_tree__decode'


def f32(x):
    return '0x%08x' % struct.unpack('<I', struct.pack('<f', x))[0]


C_SCALE = (128.0 ** -0.5) * math.log2(math.e)
NEG_BIG = -1.0e9 * math.log2(math.e)

PSTRIDE = 8448
ML_OFF = 0x220000
EPOCH_OFF = 0x240000
PROF_OFF = 3 << 20
WS_RECORDS = 0x241000

LDS_M = 0
LDS_ACC = 128
LDS_TOTAL = 128 + 4 * 4224

S_GROUP, S_SPLIT = 22, 23
SRD_K, SRD_V, SRD_W = 24, 28, 32
S_OFF = 40
S_SEL_LO, S_SEL_HI = 48, 49
S_C = 50
S_TAG = 51
S_MASKLO = 52
S_MASKW = 54
S_HEAD, S_Q = 55, 56
S_CNT = 57
S_NEGBIG = 58
S_EPOCH = 59
S_P16 = 60
S_ROW = 61
S_FIN = 62
S_TS = 64


def soff(t):
    return '0' if t == 0 else 's%d' % (S_OFF + t)


def vr(base, n=4):
    return 'v[%d:%d]' % (base, base + n - 1)


class Gen:
    def __init__(self, args):
        self.o = args
        self.a = Asm()
        self.nts = 0

    def stamp(self):
        if not self.o.prof:
            return
        self.a('s_memrealtime s[%d:%d]' % (S_TS + 2 * self.nts, S_TS + 2 * self.nts + 1))
        self.nts += 1

    def dump_stamps(self, vt):
        if not self.o.prof:
            return
        a = self.a
        a('s_waitcnt lgkmcnt(0)')
        a('s_lshl_b32 s36, s2, 2')
        a('s_add_u32 s36, s36, s3')
        a('s_lshl_b32 s36, s36, 6')
        a('s_add_u32 s36, s36, 0x%x' % PROF_OFF)
        a('s_mov_b64 exec, 1')
        a('v_mov_b32 v%d, s36' % vt)
        for i in range(self.nts):
            a('v_mov_b32 v%d, s%d' % (vt + 1, S_TS + 2 * i))
            a('buffer_store_dword v%d, v%d, s[%d:%d], 0 offen offset:%d' % (vt + 1, vt, SRD_W, SRD_W + 3, 4 * i),
              count=False)
            a('s_waitcnt vmcnt(0)')
        a('v_mov_b32 v%d, s%d' % (vt + 1, S_CNT))
        a('buffer_store_dword v%d, v%d, s[%d:%d], 0 offen offset:60' % (vt + 1, vt, SRD_W, SRD_W + 3), count=False)

    def swap_red(self, op, x, t):
        a = self.a
        a('v_mov_b32 v%d, v%d' % (t, x))
        a('v_permlane16_swap_b32 v%d, v%d' % (x, t))
        a('%s v%d, v%d, v%d' % (op, x, x, t))
        a('v_mov_b32 v%d, v%d' % (t, x))
        a('v_permlane32_swap_b32 v%d, v%d' % (x, t))
        a('%s v%d, v%d, v%d' % (op, x, x, t))

    def main_kernel(self, label):
        o, a = self.o, self.a
        ntk = ' nt' if o.ntk else ''
        ntv = ' nt' if o.ntv else ''
        VK, VV, VQ = 1, 2, 3
        t0, t1, t2 = 4, 5, 6
        CO, CML, TQ, TK, TV, COUT = 7, 56, 57, 58, 59, 60
        VLDS, VLW, VLR = 61, 62, 63
        Q = ACC = 8
        S = 24
        VB = [64, 96, 128, 160]
        K = 128
        PLO, PHI, TMP = 192, 208, 224
        ML = 24
        OB = 32
        G = 40
        MG = 48
        W0, W1 = 52, 53
        VPS, VPM = VK, VQ

        a.label(label)
        self.stamp()
        a('s_load_dwordx16 s[4:19], s[0:1], 0')
        a('s_load_dwordx2 s[20:21], s[0:1], 64')
        a('s_cmp_ge_u32 s2, 256')
        a('s_cbranch_scc1 L_end')
        a('v_lshrrev_b32 v1, 6, v0')
        a('v_and_b32 v0, 63, v0')
        a('v_readfirstlane_b32 s3, v1')
        a('s_and_b32 s%d, s2, 7' % S_GROUP)
        a('s_lshr_b32 s%d, s2, 3' % S_SPLIT)
        a('s_lshl_b32 s36, s%d, 22' % S_GROUP)
        a('s_lshl_b32 s37, s%d, 17' % S_SPLIT)
        a('s_add_u32 s36, s36, s37')
        a('v_lshrrev_b32 v%d, 4, v0' % t0)
        a('v_lshlrev_b32 v%d, 4, v0' % VV)
        a('s_lshl_b32 s37, s3, 15')
        a('s_add_u32 s36, s36, s37')
        a('v_and_b32 v%d, 3, v0' % t1)
        a('v_bfe_u32 v%d, v0, 2, 2' % t2)
        a('v_lshl_add_u32 v%d, v%d, 2, v%d' % (t1, t1, t2))
        a('v_lshlrev_b32 v%d, 8, v%d' % (VK, t1))
        a('v_lshl_add_u32 v%d, v%d, 4, v%d' % (VK, t0, VK))
        a('v_and_b32 v%d, 7, v0' % t1)
        a('v_lshlrev_b32 v%d, 8, v%d' % (VQ, t1))
        a('v_lshl_add_u32 v%d, v%d, 4, v%d' % (VQ, t0, VQ))
        a('s_lshl_b32 s37, s%d, 11' % S_GROUP)
        a('v_add_u32 v%d, s37, v%d' % (VQ, VQ))
        for t in range(1, 8):
            a('s_movk_i32 s%d, 0x%x' % (S_OFF + t, t * 4096))
        for srd in (SRD_K, SRD_V):
            a('s_mov_b32 s%d, 0x8000' % (srd + 2))
            a('s_mov_b32 s%d, 0x00020000' % (srd + 3))
        a('s_lshl_b32 s38, s%d, 7' % S_GROUP)
        a('s_add_u32 s38, s38, 0x%x' % EPOCH_OFF)
        a('s_waitcnt lgkmcnt(0)')
        a('s_add_u32 s%d, s6, s36' % SRD_K)
        a('s_addc_u32 s%d, s7, 0' % (SRD_K + 1))
        self.stamp()

        def kload(t):
            for j in range(4):
                a('buffer_load_dwordx4 %s, v%d, s[%d:%d], %s offen offset:%d%s' % (
                    vr(K + 16 * t + 4 * j), VK, SRD_K, SRD_K + 3, soff(t), 64 * j, ntk), tag='k%d_%d' % (t, j))

        def vload4(blk, half):
            for i in range(4 * half, 4 * half + 4):
                a('buffer_load_dwordx4 %s, v%d, s[%d:%d], %s offen offset:%d%s' % (
                    vr(VB[blk] + 4 * i), VV, SRD_V, SRD_V + 3, soff(2 * blk + (i >> 2)), 1024 * (i & 3), ntv),
                  tag='v%d_%d' % (blk, i))

        def kmfma(t):
            a.wait_vm('q3' if t == 0 else 'k%d_3' % t)
            for j in range(4):
                a('v_mfma_f32_16x16x32_bf16 %s, %s, %s, %s' % (
                    vr(S + 4 * t), vr(K + 16 * t + 4 * j), vr(Q + 4 * j), '0' if j == 0 else vr(S + 4 * t)))

        def f0():
            a('s_add_u32 s%d, s8, s36' % SRD_V)
            a('s_addc_u32 s%d, s9, 0' % (SRD_V + 1))
            a('s_load_dword s%d, s[20:21], s38' % S_EPOCH)
            a('s_load_dword s%d, s[14:15], 0' % S_MASKW)
            a('s_lshl_b32 s36, s3, 2')
            a('v_add_u32 v%d, s36, v%d' % (VLDS, VV))

        def f1():
            a('s_mov_b32 s%d, s20' % SRD_W)
            a('s_mov_b32 s%d, s21' % (SRD_W + 1))
            a('s_mov_b32 s%d, 0x%x' % (SRD_W + 2, (4 << 20) if o.prof else WS_RECORDS))
            a('s_mov_b32 s%d, 0x00020000' % (SRD_W + 3))
            a('s_mul_i32 s36, s3, 4224')
            a('v_add_u32 v%d, s36, v%d' % (VLW, VV))

        def f2():
            a('v_and_b32 v%d, 3, v0' % t0)
            a('v_mul_u32_u24 v%d, 1056, v%d' % (VLR, t0))
            a('v_bfe_u32 v%d, v0, 2, 1' % t1)
            a('v_lshl_add_u32 v%d, v%d, 7, v%d' % (VLR, t1, VLR))
            a('v_lshrrev_b32 v%d, 3, v0' % t1)
            a('v_lshl_add_u32 v%d, v%d, 4, v%d' % (VLR, t1, VLR))
            a('s_lshl_b32 s36, s3, 8')
            a('v_add_u32 v%d, s36, v%d' % (VLR, VLR))

        def f3():
            a('s_lshr_b32 s%d, s%d, 2' % (S_HEAD, S_SPLIT))
            a('s_and_b32 s%d, s%d, 3' % (S_Q, S_SPLIT))
            a('s_lshl_b32 s37, s%d, 3' % S_GROUP)
            a('s_add_u32 s37, s37, s%d' % S_HEAD)
            a('s_lshl_b32 s%d, s37, 8' % S_ROW)
            a('s_lshl_b32 s37, s37, 11')
            a('s_add_u32 s37, s37, 0x%x' % ML_OFF)
            a('v_add_u32 v%d, s37, v%d' % (CML, VV))
            a('v_lshlrev_b32 v%d, 2, v0' % t2)
            a('v_add_u32 v%d, s%d, v%d' % (TQ, S_ROW, t2))
            a('s_lshl_b32 s38, s%d, 8' % S_GROUP)
            a('v_add_u32 v%d, s38, v%d' % (TK, t2))

        def f4():
            a('s_lshl_b32 s36, s%d, 5' % S_Q)
            a('s_lshr_b32 s37, s3, 1')
            a('s_lshl_b32 s37, s37, 4')
            a('s_add_u32 s36, s36, s37')
            a('s_and_b32 s39, s3, 1')
            a('s_lshl_b32 s37, s39, 2')
            a('s_add_u32 s36, s36, s37')
            a('v_lshrrev_b32 v%d, 5, v0' % t1)
            a('v_lshl_add_u32 v%d, v%d, 3, v%d' % (t1, t1, t0))
            a('v_add_lshl_u32 v%d, v%d, s36, 1' % (t1, t1))
            a('v_add_u32 v%d, s%d, v%d' % (COUT, S_ROW, t1))
            a('v_add_u32 v%d, s38, v%d' % (TV, t1))

        def f5():
            a('s_mul_i32 s36, s%d, %d' % (S_GROUP, 32 * PSTRIDE))
            a('s_lshl_b32 s37, s%d, 11' % S_Q)
            a('s_add_u32 s37, s37, s36')
            a('s_lshr_b32 s38, s3, 1')
            a('s_lshl_b32 s38, s38, 10')
            a('s_add_u32 s37, s37, s38')
            a('s_lshl_b32 s38, s%d, 7' % S_HEAD)
            a('s_add_u32 s37, s37, s38')
            a('s_lshl_b32 s38, s39, 6')
            a('s_add_u32 s37, s37, s38')
            a('v_lshrrev_b32 v%d, 2, v0' % t1)
            a('v_mul_u32_u24 v%d, %d, v%d' % (CO, PSTRIDE, t1))
            a('v_lshl_add_u32 v%d, v%d, 4, v%d' % (CO, t0, CO))
            a('v_add_u32 v%d, s37, v%d' % (CO, CO))

        def f6():
            a('s_lshl_b32 s37, s%d, 14' % S_GROUP)
            a('s_lshl_b32 s38, s%d, 6' % S_SPLIT)
            a('s_add_u32 s37, s37, s38')
            a('s_lshl_b32 s38, s3, 4')
            a('s_add_u32 s37, s37, s38')
            a('s_add_u32 s37, s37, 0x%x' % ML_OFF)
            a('v_and_b32 v%d, 7, v0' % t1)
            a('v_lshlrev_b32 v%d, 11, v%d' % (VPM, t1))
            a('v_add_u32 v%d, s37, v%d' % (VPM, VPM))

        def f7():
            a('s_mov_b32 s%d, 0x05040100' % S_SEL_LO)
            a('s_mov_b32 s%d, 0x07060302' % S_SEL_HI)
            a('s_mov_b32 s%d, 0x00ff00ff' % S_MASKLO)
            a('s_mov_b32 s%d, 0x00ff00ff' % (S_MASKLO + 1))
            a('s_mov_b32 s%d, %s' % (S_C, f32(C_SCALE)))
            a('s_mov_b32 s%d, %s' % (S_NEGBIG, f32(NEG_BIG)))
            a('s_mov_b32 s%d, %d' % (S_P16, 16 * PSTRIDE))
            a('s_mov_b32 s%d, 15' % S_FIN)
            a('s_mov_b32 s%d, 15' % (S_FIN + 1))
            a('v_lshrrev_b32 v%d, 3, v0' % t2)

        def f8():
            a('s_mul_i32 s37, s%d, %d' % (S_SPLIT, PSTRIDE))
            a('s_add_u32 s36, s36, s37')
            a('s_lshl_b32 s37, s3, 11')
            a('s_add_u32 s36, s36, s37')
            a('v_add_u32 v%d, s36, v%d' % (VPS, VV))

        kload(0)
        f0()
        for j in range(4):
            a('global_load_dwordx4 %s, v%d, s[4:5] offset:%d' % (vr(Q + 4 * j), VQ, 64 * j), tag='q%d' % j)
        fl = [f1, f2, f3, f4, f5, f6, f7]
        for t in range(1, 8):
            fl[t - 1]()
            kload(t)
        f8()
        vload4(0, 0)
        self.stamp()
        kmfma(0)
        kmfma(1)
        vload4(0, 1)
        kmfma(2)
        kmfma(3)
        vload4(1, 0)
        kmfma(4)
        vload4(1, 1)
        kmfma(5)
        a('global_load_dword v%d, v%d, s[4:5]' % (TQ, TQ), tag='tq')
        a('global_load_dword v%d, v%d, s[10:11]' % (TK, TK), tag='tk')
        a('global_load_ushort v%d, v%d, s[12:13]' % (TV, TV), tag='tv')
        a('v_max3_f32 v%d, v%d, v%d, v%d' % (t0, S, S + 1, S + 2))
        a('v_max3_f32 v%d, v%d, v%d, v%d' % (t1, S + 3, S + 4, S + 5))
        idx, flip = 6, 0
        while idx < 20:
            d = (t0, t1)[flip]
            a('v_max3_f32 v%d, v%d, v%d, v%d' % (d, d, S + idx, S + idx + 1))
            idx += 2
            flip ^= 1
        vload4(2, 0)
        kmfma(6)
        kmfma(7)
        self.stamp()
        vload4(2, 1)
        while idx < 32:
            d = (t0, t1)[flip]
            a('v_max3_f32 v%d, v%d, v%d, v%d' % (d, d, S + idx, S + idx + 1))
            idx += 2
            flip ^= 1
        a('v_max_f32 v%d, v%d, v%d' % (t0, t0, t1))
        self.swap_red('v_max_f32', t0, t1)
        MC = TMP + 8
        a('v_mul_f32 v%d, s%d, v%d' % (MC, S_C, t0))
        a('s_waitcnt lgkmcnt(0)')
        a('s_mul_i32 s%d, s%d, 0x9e3779b1' % (S_TAG, S_EPOCH))
        a('s_add_u32 s%d, s%d, 0x7f4a7c15' % (S_TAG, S_TAG))
        for i in range(32):
            a('v_fma_f32 v%d, v%d, s%d, -v%d' % (S + i, S + i, S_C, MC))
        vload4(3, 0)
        for i in range(32):
            a('v_exp_f32 v%d, v%d' % (S + i, S + i))
        vload4(3, 1)
        self.stamp()
        for r in range(4):
            a('v_mov_b32 v%d, 0x3f803f80' % (TMP + 4 + r))
        for i in range(16):
            a('v_cvt_pk_bf16_f32 v%d, v%d, v%d' % (S + 2 * i, S + 2 * i, S + 2 * i + 1))
        for i in range(16):
            a('v_cndmask_b32 v%d, 0, v%d, s[%d:%d]' % (PLO + i, S + 2 * i, S_MASKLO, S_MASKLO + 1))
        for b in range(4):
            a('v_mfma_f32_16x16x32_bf16 %s, %s, %s, %s' % (
                vr(TMP + 12), vr(TMP + 4), vr(PLO + 4 * b), '0' if b == 0 else vr(TMP + 12)))
        for i in range(16):
            a('v_cndmask_b32 v%d, v%d, 0, s[%d:%d]' % (PHI + i, S + 2 * i, S_MASKLO, S_MASKLO + 1))
        a('v_mov_b32 v%d, v%d' % (MG, MC))
        a('v_mov_b32 v%d, s%d' % (MG + 1, S_TAG))
        a('v_mov_b32 v%d, v%d' % (MG + 2, TMP + 12))
        a('v_mov_b32 v%d, s%d' % (MG + 3, S_TAG))
        a('s_mov_b64 exec, 0xff')
        a('buffer_store_dwordx4 %s, v%d, s[%d:%d], 0 offen sc1' % (vr(MG), VPM, SRD_W, SRD_W + 3), tag='mlst')
        a('ds_write_b32 v%d, v%d offset:%d' % (VLDS, MG, LDS_M))
        a('s_mov_b64 exec, -1')
        for r in range(4):
            a('v_mov_b32 v%d, s%d' % (G + 2 * r + 1, S_TAG))
        a('v_lshlrev_b32 v%d, 4, v%d' % (VLDS, t2))
        self.stamp()

        def ml_loads(count=True):
            for i in range(2):
                a('buffer_load_dwordx4 %s, v%d, s[%d:%d], 0 offen offset:%d sc1' % (
                    vr(ML + 4 * i), CML, SRD_W, SRD_W + 3, 1024 * i), tag='ml%d' % i, count=count)

        def o_loads(count=True):
            for i in range(2):
                a('buffer_load_dwordx4 %s, v%d, s[%d:%d], %s offen sc1' % (
                    vr(OB + 4 * i), CO, SRD_W, SRD_W + 3, '0' if i == 0 else 's%d' % S_P16),
                  tag='o%d' % i, count=count)

        def tag_check(b):
            a('v_xor_b32 v%d, s%d, v%d' % (t0, S_TAG, b + 1))
            a('v_xor_b32 v%d, s%d, v%d' % (t1, S_TAG, b + 5))
            a('v_bitop3_b32 v%d, v%d, s%d, v%d bitop3:0xbe' % (t0, b + 3, S_TAG, t0))
            a('v_bitop3_b32 v%d, v%d, s%d, v%d bitop3:0xbe' % (t1, b + 7, S_TAG, t1))
            a('v_or_b32 v%d, v%d, v%d' % (t0, t0, t1))
            a('v_cmp_ne_u32 vcc, 0, v%d' % t0)

        def tree_score():
            a.wait_vm('tv')
            a('v_lshlrev_b32 v%d, 16, v%d' % (t0, TQ))
            a('v_lshlrev_b32 v%d, 16, v%d' % (t1, TK))
            a('v_and_b32 v%d, 0xffff0000, v%d' % (TQ, TQ))
            a('v_and_b32 v%d, 0xffff0000, v%d' % (TK, TK))
            a('v_mul_f32 v%d, v%d, v%d' % (t0, t0, t1))
            a('v_fmac_f32 v%d, v%d, v%d' % (t0, TQ, TK))
            a('v_lshlrev_b32 v%d, 16, v%d' % (TV, TV))
            a('s_lshr_b32 s36, s%d, 2' % S_GROUP)
            a('s_lshl_b32 s36, s36, 4')
            for sh in (8, 4, 2, 1):
                a('v_add_f32_dpp v%d, v%d, v%d row_ror:%d row_mask:0xf bank_mask:0xf' % (t0, t0, t0, sh))
            self.swap_red('v_add_f32', t0, t1)
            a('s_lshr_b32 s36, s%d, s36' % S_MASKW)
            a('s_lshl_b32 s36, s36, 16')
            a('v_mov_b32 v%d, s36' % t1)
            a('v_sub_f32 v%d, 1.0, v%d' % (t1, t1))
            a('v_mul_f32 v%d, s%d, v%d' % (t1, S_NEGBIG, t1))
            a('v_fma_f32 v%d, v%d, s%d, v%d' % (TQ, t0, S_C, t1))

        for blk in range(4):
            if blk == 2:
                tree_score()
            if blk == 3:
                ml_loads()
            for k in range(4):
                if blk == 3 or k == 0 or k == 2:
                    kk = k if blk == 3 else k + 1
                    a.wait_vm('v%d_%d' % (blk, 2 * kk + 1))
                for e in range(8):
                    x = VB[blk] + 4 * (2 * k) + (e >> 1)
                    y = VB[blk] + 4 * (2 * k + 1) + (e >> 1)
                    a('v_perm_b32 v%d, v%d, v%d, s%d' % (TMP + 4 * e + k, y, x, S_SEL_HI if e & 1 else S_SEL_LO))
            if blk == 3:
                self.stamp()
            for e in range(8):
                ep = e & 3
                first = blk == 0 and e < 4
                a('v_mfma_f32_16x16x32_bf16 %s, %s, %s, %s' % (
                    vr(ACC + 4 * ep), vr(TMP + 4 * e), vr((PLO if e < 4 else PHI) + 4 * blk),
                    '0' if first else vr(ACC + 4 * ep)))
        for ep in range(4):
            a('ds_write_b128 v%d, %s offset:%d' % (VLW, vr(ACC + 4 * ep), LDS_ACC + 1056 * ep))
        a('s_waitcnt lgkmcnt(0)')
        a('s_barrier')
        R = TMP
        M4 = TMP + 16
        a('ds_read_b128 %s, v%d offset:%d' % (vr(M4), VLDS, LDS_M))
        for w in range(4):
            a('ds_read_b128 %s, v%d offset:%d' % (vr(R + 4 * w), VLR, LDS_ACC + 4224 * w))
        a('s_waitcnt lgkmcnt(4)')
        a('v_max3_f32 v%d, v%d, v%d, v%d' % (t0, M4, M4 + 1, M4 + 2))
        a('v_max_f32 v%d, v%d, v%d' % (t0, t0, M4 + 3))
        for w in range(4):
            a('v_sub_f32 v%d, v%d, v%d' % (M4 + w, M4 + w, t0))
        for w in range(4):
            a('v_exp_f32 v%d, v%d' % (M4 + w, M4 + w))
        a('s_waitcnt lgkmcnt(2)')
        for r in range(4):
            a('v_mul_f32 v%d, v%d, v%d' % (R + r, R + r, M4))
        for r in range(4):
            a('v_fmac_f32 v%d, v%d, v%d' % (R + r, R + 4 + r, M4 + 1))
        a('s_waitcnt lgkmcnt(0)')
        for st in range(2):
            for r in (2 * st, 2 * st + 1):
                a('v_fmac_f32 v%d, v%d, v%d' % (R + r, R + 8 + r, M4 + 2))
            for r in (2 * st, 2 * st + 1):
                a('v_fma_f32 v%d, v%d, v%d, v%d' % (G + 2 * r, R + 12 + r, M4 + 3, R + r))
            a('buffer_store_dwordx4 %s, v%d, s[%d:%d], 0 offen offset:%d sc1' % (
                vr(G + 4 * st), VPS, SRD_W, SRD_W + 3, 1024 * st), tag='ost%d' % st)
        o_loads()
        self.stamp()
        a('s_mov_b32 s%d, 0x%x' % (S_CNT, o.spin))
        a.wait_vm('ml1')
        a.label('L_mlchk')
        tag_check(ML)
        a('s_cbranch_vccz L_mlok')
        a('s_mov_b64 exec, vcc')
        ml_loads(False)
        a('s_mov_b64 exec, -1')
        a('s_waitcnt vmcnt(0)')
        a('s_sub_u32 s%d, s%d, 1' % (S_CNT, S_CNT))
        a('s_cbranch_scc0 L_mlchk')
        a('s_branch L_end')
        a.label('L_mlok')
        a('v_max_f32_dpp v%d, v%d, v%d quad_perm:[1,0,3,2] row_mask:0xf bank_mask:0xf' % (W0, ML, ML))
        a('v_max_f32_dpp v%d, v%d, v%d quad_perm:[1,0,3,2] row_mask:0xf bank_mask:0xf' % (W1, ML + 4, ML + 4))
        a('v_max_f32_dpp v%d, v%d, v%d quad_perm:[2,3,0,1] row_mask:0xf bank_mask:0xf' % (W0, W0, W0))
        a('v_max_f32_dpp v%d, v%d, v%d quad_perm:[2,3,0,1] row_mask:0xf bank_mask:0xf' % (W1, W1, W1))
        a('v_max3_f32 v%d, v%d, v%d, v%d' % (t0, W0, W1, TQ))
        a('v_max_f32_dpp v%d, v%d, v%d row_ror:8 row_mask:0xf bank_mask:0xf' % (t0, t0, t0))
        a('v_max_f32_dpp v%d, v%d, v%d row_ror:4 row_mask:0xf bank_mask:0xf' % (t0, t0, t0))
        self.swap_red('v_max_f32', t0, t1)
        for x in (ML, ML + 4, W0, W1, TQ):
            a('v_sub_f32 v%d, v%d, v%d' % (x, x, t0))
        for x in (ML, ML + 4, W0, W1, TQ):
            a('v_exp_f32 v%d, v%d' % (x, x))
        a('v_mul_f32 v%d, v%d, v%d' % (t0, ML, ML + 2))
        a('v_fmac_f32 v%d, v%d, v%d' % (t0, ML + 4, ML + 6))
        a('v_mul_f32 v%d, v%d, v%d' % (TV, TV, TQ))
        for sh in (8, 4, 2, 1):
            a('v_add_f32_dpp v%d, v%d, v%d row_ror:%d row_mask:0xf bank_mask:0xf' % (t0, t0, t0, sh))
        self.swap_red('v_add_f32', t0, t1)
        a('v_add_f32 v%d, v%d, v%d' % (t0, t0, TQ))
        a('v_rcp_f32 v%d, v%d' % (t0, t0))
        for x in (W0, W1, TV):
            a('v_mul_f32 v%d, v%d, v%d' % (x, x, t0))
        self.stamp()
        a.label('L_ochk')
        a('s_waitcnt vmcnt(0)')
        tag_check(OB)
        a('s_cbranch_vccz L_ook')
        a('s_mov_b64 exec, vcc')
        o_loads(False)
        a('s_mov_b64 exec, -1')
        a('s_sub_u32 s%d, s%d, 1' % (S_CNT, S_CNT))
        a('s_cbranch_scc0 L_ochk')
        a('s_branch L_end')
        a.label('L_ook')
        self.stamp()
        a('v_mul_f32 v%d, v%d, v%d' % (OB, OB, W0))
        a('v_mul_f32 v%d, v%d, v%d' % (OB + 2, OB + 2, W0))
        a('v_fmac_f32 v%d, v%d, v%d' % (OB, OB + 4, W1))
        a('v_fmac_f32 v%d, v%d, v%d' % (OB + 2, OB + 6, W1))
        a('v_permlane32_swap_b32 v%d, v%d' % (OB, OB + 2))
        a('v_add_f32 v%d, v%d, v%d' % (OB, OB, OB + 2))
        a('v_mov_b32 v%d, v%d' % (t1, OB))
        a('v_permlane16_swap_b32 v%d, v%d' % (OB, t1))
        a('v_add_f32 v%d, v%d, v%d' % (OB, OB, t1))
        a('v_add_f32_dpp v%d, v%d, v%d row_ror:8 row_mask:0xf bank_mask:0xf' % (OB, OB, OB))
        a('v_add_f32_dpp v%d, v%d, v%d row_ror:4 row_mask:0xf bank_mask:0xf' % (OB, OB, OB))
        a('v_add_f32 v%d, v%d, v%d' % (OB, OB, TV))
        a('v_cvt_pk_bf16_f32 v%d, v%d, v%d' % (OB, OB, OB))
        a('s_mov_b64 exec, s[%d:%d]' % (S_FIN, S_FIN + 1))
        a('global_store_short v%d, v%d, s[16:17]' % (COUT, OB))
        a('s_or_b32 s36, s%d, s3' % S_SPLIT)
        a('s_cmp_lg_u32 s36, 0')
        a('s_cbranch_scc1 L_done')
        a('s_mov_b64 exec, 1')
        a('s_lshl_b32 s38, s%d, 7' % S_GROUP)
        a('s_add_u32 s38, s38, 0x%x' % EPOCH_OFF)
        a('v_mov_b32 v%d, s38' % t0)
        a('buffer_store_dword v%d, v%d, s[%d:%d], 0 offen sc1' % (G + 1, t0, SRD_W, SRD_W + 3))
        a.label('L_done')
        self.stamp()
        self.dump_stamps(t0)
        a.label('L_end')
        a('s_endpgm')

    def build(self):
        o = self.o
        main = NAME + '_kernel'
        head = ['; tree-attention decode: split-KV flash decoding with an in-launch tagged combine (own generator)']
        head.append('; @launch grid=(256,1,1) block=(256,1,1) lds=%d' % max(LDS_TOTAL, o.lds))
        head += ['.amdgcn_target "amdgcn-amd-amdhsa--gfx950"', '.text']
        a = self.a
        a.raw('.globl %s' % main)
        a.raw('.p2align %d' % o.align)
        a.raw('.type %s,@function' % main)
        self.main_kernel(main)
        tail = ['.section .rodata,"a"', '.p2align 6', '.amdhsa_kernel %s' % main,
                '  .amdhsa_next_free_vgpr 256',
                '  .amdhsa_next_free_sgpr 102',
                '  .amdhsa_accum_offset 256',
                '  .amdhsa_group_segment_fixed_size 0',
                '  .amdhsa_kernarg_size 72',
                '  .amdhsa_user_sgpr_count 2',
                '  .amdhsa_user_sgpr_kernarg_segment_ptr 1',
                '  .amdhsa_system_sgpr_workgroup_id_x 1',
                '.end_amdhsa_kernel']
        return '\n'.join(head) + '\n' + a.text() + '\n'.join(tail) + '\n'


def main():
    p = argparse.ArgumentParser()
    p.add_argument('--ntk', type=int, default=0)
    p.add_argument('--ntv', type=int, default=0)
    p.add_argument('--prof', type=int, default=0)
    p.add_argument('--lds', type=int, default=0)
    p.add_argument('--align', type=int, default=8)
    p.add_argument('--spin', type=int, default=200000)
    p.add_argument('-o', default='var/f2.s')
    args = p.parse_args()
    g = Gen(args)
    txt = g.build()
    open(args.o, 'w').write(txt)
    print('wrote', args.o, 'max outstanding', g.a.maxout, 'lines', txt.count('\n'), file=sys.stderr)


if __name__ == '__main__':
    main()
```

```python
import argparse
import math
import struct
import sys

from asmlib import Asm

NAME = 'standalone__tree_speculative_verify_tree_attention_over_candidate_token_tree__decode'


def f32(x):
    return '0x%08x' % struct.unpack('<I', struct.pack('<f', x))[0]


C_SCALE = (128.0 ** -0.5) * math.log2(math.e)
NEG_BIG = -1.0e9 * math.log2(math.e)

WSTRIDE = 2176
PSTRIDE = 8832
XT_OFF = 0x230000
EPOCH_OFF = 0x240000
PROF_OFF = 3 << 20
WS_RECORDS = 0x241000

LDS_M = 0
LDS_ACC = 256
LDS_TOTAL = 256 + 4 * 4224

S_GROUP, S_SPLIT = 22, 23
SRD_K, SRD_V, SRD_W = 24, 28, 32
S_OFF = 40
S_SEL_LO, S_SEL_HI = 48, 49
S_C = 50
S_TAG = 51
S_MASKLO = 52
S_MASKW = 54
S_HEAD, S_Q = 55, 56
S_CNT = 57
S_NEGBIG = 58
S_EPOCH = 59
S_P16 = 60
S_ROW = 61
S_FIN = 62
S_TS = 64
S_XCC = 99
S_FAST = 100


def soff(t):
    return '0' if t == 0 else 's%d' % (S_OFF + t)


def vr(base, n=4):
    return 'v[%d:%d]' % (base, base + n - 1)


class Gen:
    def __init__(self, args):
        self.o = args
        self.a = Asm()
        self.nts = 0

    def stamp(self):
        if not self.o.prof:
            return
        self.a('s_memrealtime s[%d:%d]' % (S_TS + 2 * self.nts, S_TS + 2 * self.nts + 1))
        self.nts += 1

    def dump_stamps(self, vt):
        if not self.o.prof:
            return
        a = self.a
        a('s_waitcnt lgkmcnt(0)')
        a('s_lshl_b32 s36, s2, 2')
        a('s_add_u32 s36, s36, s3')
        a('s_lshl_b32 s36, s36, 6')
        a('s_add_u32 s36, s36, 0x%x' % PROF_OFF)
        a('s_mov_b64 exec, 1')
        a('v_mov_b32 v%d, s36' % vt)
        for i in range(self.nts):
            a('v_mov_b32 v%d, s%d' % (vt + 1, S_TS + 2 * i))
            a('buffer_store_dword v%d, v%d, s[%d:%d], 0 offen offset:%d' % (vt + 1, vt, SRD_W, SRD_W + 3, 4 * i),
              count=False)
            a('s_waitcnt vmcnt(0)')
        a('v_mov_b32 v%d, s98' % (vt + 1))
        a('buffer_store_dword v%d, v%d, s[%d:%d], 0 offen offset:56' % (vt + 1, vt, SRD_W, SRD_W + 3), count=False)
        a('s_waitcnt vmcnt(0)')
        a('v_mov_b32 v%d, s%d' % (vt + 1, S_CNT))
        a('buffer_store_dword v%d, v%d, s[%d:%d], 0 offen offset:60' % (vt + 1, vt, SRD_W, SRD_W + 3), count=False)

    def swap_red(self, op, x, t):
        a = self.a
        a('v_mov_b32 v%d, v%d' % (t, x))
        a('v_permlane16_swap_b32 v%d, v%d' % (x, t))
        a('%s v%d, v%d, v%d' % (op, x, x, t))
        a('v_mov_b32 v%d, v%d' % (t, x))
        a('v_permlane32_swap_b32 v%d, v%d' % (x, t))
        a('%s v%d, v%d, v%d' % (op, x, x, t))

    def main_kernel(self, label):
        o, a = self.o, self.a
        ntk = ' nt' if o.ntk else ''
        ntv = ' nt' if o.ntv else ''
        VK, VV, VQ = 1, 2, 3
        t0, t1, t2 = 4, 5, 6
        CO, CML, TQ, TK, TV, COUT = 7, 56, 57, 58, 59, 60
        VLDS, VLW, VLR = 61, 62, 63
        Q = ACC = 8
        S = 24
        VB = [64, 96, 128, 160]
        K = 128
        PLO, PHI, TMP = 192, 208, 224
        ML = 24
        OB = 32
        G = 40
        MG = 48
        W0, W1 = 52, 53
        XT = 54
        XL = 0
        VPS, VPM = VK, VQ

        a.label(label)
        self.stamp()
        a('s_load_dwordx16 s[4:19], s[0:1], 0')
        a('s_load_dwordx2 s[20:21], s[0:1], 64')
        a('s_cmp_ge_u32 s2, 256')
        a('s_cbranch_scc1 L_end')
        a('v_lshrrev_b32 v1, 6, v0')
        a('v_and_b32 v0, 63, v0')
        a('v_readfirstlane_b32 s3, v1')
        a('s_and_b32 s%d, s2, 7' % S_GROUP)
        a('s_lshr_b32 s%d, s2, 3' % S_SPLIT)
        a('s_lshl_b32 s36, s%d, 22' % S_GROUP)
        a('s_lshl_b32 s37, s%d, 17' % S_SPLIT)
        a('s_add_u32 s36, s36, s37')
        a('v_lshrrev_b32 v%d, 4, v0' % t0)
        a('v_lshlrev_b32 v%d, 4, v0' % VV)
        a('s_lshl_b32 s37, s3, 15')
        a('s_add_u32 s36, s36, s37')
        a('v_and_b32 v%d, 3, v0' % t1)
        a('v_bfe_u32 v%d, v0, 2, 2' % t2)
        a('v_lshl_add_u32 v%d, v%d, 2, v%d' % (t1, t1, t2))
        a('v_lshlrev_b32 v%d, 8, v%d' % (VK, t1))
        a('v_lshl_add_u32 v%d, v%d, 4, v%d' % (VK, t0, VK))
        a('v_and_b32 v%d, 7, v0' % t1)
        a('v_lshlrev_b32 v%d, 8, v%d' % (VQ, t1))
        a('v_lshl_add_u32 v%d, v%d, 4, v%d' % (VQ, t0, VQ))
        a('s_lshl_b32 s37, s%d, 11' % S_GROUP)
        a('v_add_u32 v%d, s37, v%d' % (VQ, VQ))
        for t in range(1, 8):
            a('s_movk_i32 s%d, 0x%x' % (S_OFF + t, t * 4096))
        for srd in (SRD_K, SRD_V):
            a('s_mov_b32 s%d, 0x8000' % (srd + 2))
            a('s_mov_b32 s%d, 0x00020000' % (srd + 3))
        a('s_lshl_b32 s38, s%d, 7' % S_GROUP)
        a('s_add_u32 s38, s38, 0x%x' % EPOCH_OFF)
        a('s_waitcnt lgkmcnt(0)')
        a('s_add_u32 s%d, s6, s36' % SRD_K)
        a('s_addc_u32 s%d, s7, 0' % (SRD_K + 1))
        self.stamp()

        def kload(t):
            for j in range(4):
                a('buffer_load_dwordx4 %s, v%d, s[%d:%d], %s offen offset:%d%s' % (
                    vr(K + 16 * t + 4 * j), VK, SRD_K, SRD_K + 3, soff(t), 64 * j, ntk), tag='k%d_%d' % (t, j))

        def vload4(blk, half):
            for i in range(4 * half, 4 * half + 4):
                a('buffer_load_dwordx4 %s, v%d, s[%d:%d], %s offen offset:%d%s' % (
                    vr(VB[blk] + 4 * i), VV, SRD_V, SRD_V + 3, soff(2 * blk + (i >> 2)), 1024 * (i & 3), ntv),
                  tag='v%d_%d' % (blk, i))

        def kmfma(t):
            a.wait_vm('q3' if t == 0 else 'k%d_3' % t)
            for j in range(4):
                a('v_mfma_f32_16x16x32_bf16 %s, %s, %s, %s' % (
                    vr(S + 4 * t), vr(K + 16 * t + 4 * j), vr(Q + 4 * j), '0' if j == 0 else vr(S + 4 * t)))

        def f0():
            a('s_add_u32 s%d, s8, s36' % SRD_V)
            a('s_addc_u32 s%d, s9, 0' % (SRD_V + 1))
            a('s_load_dword s%d, s[20:21], s38' % S_EPOCH)
            a('s_load_dword s%d, s[14:15], 0' % S_MASKW)
            a('s_lshl_b32 s36, s3, 2')
            a('v_lshl_add_u32 v%d, v0, 5, s36' % VLDS)
            a('s_getreg_b32 s%d, hwreg(HW_REG_XCC_ID, 0, 4)' % S_XCC)

        def f1():
            a('s_mov_b32 s%d, s20' % SRD_W)
            a('s_mov_b32 s%d, s21' % (SRD_W + 1))
            a('s_mov_b32 s%d, 0x%x' % (SRD_W + 2, (4 << 20) if o.prof else WS_RECORDS))
            a('s_mov_b32 s%d, 0x00020000' % (SRD_W + 3))
            a('s_mul_i32 s36, s3, 4224')
            a('v_add_u32 v%d, s36, v%d' % (VLW, VV))

        def f2():
            a('v_and_b32 v%d, 3, v0' % t0)
            a('v_mul_u32_u24 v%d, 1056, v%d' % (VLR, t0))
            a('v_bfe_u32 v%d, v0, 2, 1' % t1)
            a('v_lshl_add_u32 v%d, v%d, 7, v%d' % (VLR, t1, VLR))
            a('v_lshrrev_b32 v%d, 3, v0' % t1)
            a('v_lshl_add_u32 v%d, v%d, 4, v%d' % (VLR, t1, VLR))
            a('s_lshl_b32 s36, s3, 8')
            a('v_add_u32 v%d, s36, v%d' % (VLR, VLR))

        def f3():
            a('s_lshr_b32 s%d, s%d, 2' % (S_HEAD, S_SPLIT))
            a('s_and_b32 s%d, s%d, 3' % (S_Q, S_SPLIT))
            a('s_lshl_b32 s37, s%d, 3' % S_GROUP)
            a('s_add_u32 s37, s37, s%d' % S_HEAD)
            a('s_lshl_b32 s%d, s37, 8' % S_ROW)
            a('v_lshlrev_b32 v%d, 2, v0' % t2)
            a('v_add_u32 v%d, s%d, v%d' % (TQ, S_ROW, t2))
            a('s_lshl_b32 s38, s%d, 8' % S_GROUP)
            a('v_add_u32 v%d, s38, v%d' % (TK, t2))

        def f4():
            a('s_lshl_b32 s36, s%d, 5' % S_Q)
            a('s_lshr_b32 s37, s3, 1')
            a('s_lshl_b32 s37, s37, 4')
            a('s_add_u32 s36, s36, s37')
            a('s_and_b32 s39, s3, 1')
            a('s_lshl_b32 s37, s39, 2')
            a('s_add_u32 s36, s36, s37')
            a('v_lshrrev_b32 v%d, 5, v0' % t1)
            a('v_lshl_add_u32 v%d, v%d, 3, v%d' % (t1, t1, t0))
            a('v_add_lshl_u32 v%d, v%d, s36, 1' % (t1, t1))
            a('v_add_u32 v%d, s%d, v%d' % (COUT, S_ROW, t1))
            a('v_add_u32 v%d, s38, v%d' % (TV, t1))

        def f5():
            a('s_mul_i32 s36, s%d, %d' % (S_GROUP, 32 * PSTRIDE))
            a('s_mul_i32 s37, s%d, %d' % (S_Q, WSTRIDE))
            a('s_add_u32 s37, s37, s36')
            a('s_lshl_b32 s38, s%d, 4' % S_HEAD)
            a('s_add_u32 s38, s38, s37')
            a('v_lshrrev_b32 v%d, 2, v0' % t1)
            a('v_mul_u32_u24 v%d, %d, v%d' % (CO, PSTRIDE, t1))
            a('v_add_u32 v%d, s38, v%d' % (CML, CO))
            a('s_lshr_b32 s38, s3, 1')
            a('s_lshl_b32 s38, s38, 10')
            a('s_add_u32 s37, s37, s38')
            a('s_lshl_b32 s38, s%d, 7' % S_HEAD)
            a('s_add_u32 s37, s37, s38')
            a('s_lshl_b32 s38, s39, 6')
            a('s_add_u32 s37, s37, s38')
            a('v_lshl_add_u32 v%d, v%d, 4, v%d' % (CO, t0, CO))
            a('v_add_u32 v%d, s37, v%d' % (CO, CO))

        def f6():
            a('s_mov_b32 s%d, 0x05040100' % S_SEL_LO)
            a('s_mov_b32 s%d, 0x07060302' % S_SEL_HI)
            a('s_mov_b32 s%d, 0x00ff00ff' % S_MASKLO)
            a('s_mov_b32 s%d, 0x00ff00ff' % (S_MASKLO + 1))
            a('v_lshrrev_b32 v%d, 3, v0' % t2)

        def publish_xcc():
            a('s_waitcnt lgkmcnt(0)')
            a('s_mul_i32 s%d, s%d, 0x9e3779b1' % (S_TAG, S_EPOCH))
            a('s_add_u32 s%d, s%d, 0x7f4a7c15' % (S_TAG, S_TAG))
            a('s_add_u32 s%d, s%d, s%d' % (S_XCC, S_XCC, S_TAG))
            a('s_cmp_lg_u32 s3, 0')
            a('s_cbranch_scc1 L_xskip')
            a('s_lshl_b32 s96, s%d, 7' % S_GROUP)
            a('s_lshl_b32 s97, s%d, 2' % S_SPLIT)
            a('s_add_u32 s96, s96, s97')
            a('s_add_u32 s96, s96, 0x%x' % XT_OFF)
            a('v_mov_b32 v%d, s%d' % (XT, S_XCC))
            a('s_mov_b64 exec, 1')
            a('buffer_store_dword v%d, off, s[%d:%d], s96 sc1' % (XT, SRD_W, SRD_W + 3), count=False)
            a('s_mov_b64 exec, -1')
            a.label('L_xskip')

        def f7():
            a('s_mov_b32 s%d, %s' % (S_C, f32(C_SCALE)))
            a('s_mov_b32 s%d, %s' % (S_NEGBIG, f32(NEG_BIG)))
            a('s_mov_b32 s%d, %d' % (S_P16, 16 * PSTRIDE))
            a('s_mov_b32 s%d, 15' % S_FIN)
            a('s_mov_b32 s%d, 15' % (S_FIN + 1))
            a('s_lshl_b32 s37, s%d, 7' % S_GROUP)
            a('s_add_u32 s37, s37, 0x%x' % XT_OFF)
            a('v_and_b32 v%d, 31, v0' % XL)
            a('v_lshl_add_u32 v%d, v%d, 2, s37' % (XL, XL))

        def f8():
            a('s_mul_i32 s37, s%d, %d' % (S_SPLIT, PSTRIDE))
            a('s_add_u32 s36, s36, s37')
            a('s_mul_i32 s37, s3, %d' % WSTRIDE)
            a('s_add_u32 s36, s36, s37')
            a('v_add_u32 v%d, s36, v%d' % (VPS, VV))
            a('v_lshl_add_u32 v%d, v%d, 4, s36' % (VPM, t2))

        def tree_loads():
            a('global_load_dword v%d, v%d, s[4:5]' % (TQ, TQ), tag='tq')
            a('global_load_dword v%d, v%d, s[10:11]' % (TK, TK), tag='tk')
            a('global_load_ushort v%d, v%d, s[12:13]' % (TV, TV), tag='tv')
            a('buffer_load_dword v%d, v%d, s[%d:%d], 0 offen sc1' % (XL, XL, SRD_W, SRD_W + 3), tag='xt')

        kload(0)
        f0()
        for j in range(4):
            a('global_load_dwordx4 %s, v%d, s[4:5] offset:%d' % (vr(Q + 4 * j), VQ, 64 * j), tag='q%d' % j)
        fl = [f1, f2, f3, f4, f5, f6, f7]
        for t in range(1, 8):
            fl[t - 1]()
            if t == o.pub:
                publish_xcc()
            kload(t)
        f8()
        vload4(0, 0)
        self.stamp()
        kmfma(0)
        kmfma(1)
        vload4(0, 1)
        kmfma(2)
        kmfma(3)
        vload4(1, 0)
        kmfma(4)
        vload4(1, 1)
        kmfma(5)
        tree_loads()
        a('v_max3_f32 v%d, v%d, v%d, v%d' % (t0, S, S + 1, S + 2))
        a('v_max3_f32 v%d, v%d, v%d, v%d' % (t1, S + 3, S + 4, S + 5))
        idx, flip = 6, 0
        while idx < 20:
            d = (t0, t1)[flip]
            a('v_max3_f32 v%d, v%d, v%d, v%d' % (d, d, S + idx, S + idx + 1))
            idx += 2
            flip ^= 1
        vload4(2, 0)
        kmfma(6)
        kmfma(7)
        self.stamp()
        vload4(2, 1)
        while idx < 32:
            d = (t0, t1)[flip]
            a('v_max3_f32 v%d, v%d, v%d, v%d' % (d, d, S + idx, S + idx + 1))
            idx += 2
            flip ^= 1
        a('v_max_f32 v%d, v%d, v%d' % (t0, t0, t1))
        self.swap_red('v_max_f32', t0, t1)
        MC = TMP + 8
        a('v_mul_f32 v%d, s%d, v%d' % (MC, S_C, t0))
        for i in range(32):
            a('v_fma_f32 v%d, v%d, s%d, -v%d' % (S + i, S + i, S_C, MC))
        vload4(3, 0)
        for i in range(32):
            a('v_exp_f32 v%d, v%d' % (S + i, S + i))
        vload4(3, 1)
        self.stamp()
        for r in range(4):
            a('v_mov_b32 v%d, 0x3f803f80' % (TMP + 4 + r))
        for i in range(16):
            a('v_cvt_pk_bf16_f32 v%d, v%d, v%d' % (S + 2 * i, S + 2 * i, S + 2 * i + 1))
        for i in range(16):
            a('v_cndmask_b32 v%d, 0, v%d, s[%d:%d]' % (PLO + i, S + 2 * i, S_MASKLO, S_MASKLO + 1))
        for b in range(4):
            a('v_mfma_f32_16x16x32_bf16 %s, %s, %s, %s' % (
                vr(TMP + 12), vr(TMP + 4), vr(PLO + 4 * b), '0' if b == 0 else vr(TMP + 12)))
        for i in range(16):
            a('v_cndmask_b32 v%d, v%d, 0, s[%d:%d]' % (PHI + i, S + 2 * i, S_MASKLO, S_MASKLO + 1))
        a('s_mov_b64 exec, 0xff')
        a('ds_write2_b32 v%d, v%d, v%d offset0:%d offset1:%d' % (VLDS, MC, TMP + 12, LDS_M // 4, LDS_M // 4 + 4))
        a('s_mov_b64 exec, -1')

        def out_stores(flag, count=True):
            a('buffer_store_dwordx4 %s, v%d, s[%d:%d], 0 offen offset:2048%s' % (
                vr(MG), VPM, SRD_W, SRD_W + 3, flag), count=count)
            for st in range(2):
                a('buffer_store_dwordx4 %s, v%d, s[%d:%d], 0 offen offset:%d%s' % (
                    vr(G + 4 * st), VPS, SRD_W, SRD_W + 3, 1024 * st, flag), count=count)

        if o.prime:
            a('s_not_b32 s36, s%d' % S_TAG)
            for r in range(6):
                a('v_mov_b32 v%d, s36' % (G + 2 * r + 1))
            out_stores('')
        a('v_lshlrev_b32 v%d, 5, v%d' % (VLDS, t2))
        for r in range(6):
            a('v_mov_b32 v%d, s%d' % (G + 2 * r + 1, S_TAG))
        self.stamp()

        def in_loads(count=True):
            for i in range(2):
                a('buffer_load_dwordx4 %s, v%d, s[%d:%d], %s offen offset:2048 sc1' % (
                    vr(ML + 4 * i), CML, SRD_W, SRD_W + 3, '0' if i == 0 else 's%d' % S_P16), count=count)
            for i in range(2):
                a('buffer_load_dwordx4 %s, v%d, s[%d:%d], %s offen sc1' % (
                    vr(OB + 4 * i), CO, SRD_W, SRD_W + 3, '0' if i == 0 else 's%d' % S_P16), count=count)

        def tag_check():
            b = ML
            a('v_xor_b32 v%d, s%d, v%d' % (t0, S_TAG, b + 1))
            a('v_xor_b32 v%d, s%d, v%d' % (t1, S_TAG, b + 3))
            for i in range(5, 16, 2):
                d = (t0, t1)[(i >> 1) & 1]
                a('v_bitop3_b32 v%d, v%d, s%d, v%d bitop3:0xbe' % (d, b + i, S_TAG, d))
            a('v_or_b32 v%d, v%d, v%d' % (t0, t0, t1))
            a('v_cmp_ne_u32 vcc, 0, v%d' % t0)

        def tree_score():
            a.wait_vm('xt')
            self.stamp()
            a('v_cmp_eq_u32 vcc, s%d, v%d' % (S_XCC, XL))
            a('v_lshlrev_b32 v%d, 16, v%d' % (t0, TQ))
            a('v_lshlrev_b32 v%d, 16, v%d' % (t1, TK))
            a('v_and_b32 v%d, 0xffff0000, v%d' % (TQ, TQ))
            a('v_and_b32 v%d, 0xffff0000, v%d' % (TK, TK))
            a('v_mul_f32 v%d, v%d, v%d' % (t0, t0, t1))
            a('v_fmac_f32 v%d, v%d, v%d' % (t0, TQ, TK))
            a('v_lshlrev_b32 v%d, 16, v%d' % (TV, TV))
            a('s_cmp_eq_u64 vcc, -1')
            a('s_cselect_b32 s%d, %d, 0' % (S_FAST, o.fast))
            a('s_lshr_b32 s36, s%d, 2' % S_GROUP)
            a('s_lshl_b32 s36, s36, 4')
            for sh in (8, 4, 2, 1):
                a('v_add_f32_dpp v%d, v%d, v%d row_ror:%d row_mask:0xf bank_mask:0xf' % (t0, t0, t0, sh))
            self.swap_red('v_add_f32', t0, t1)
            a('s_lshr_b32 s36, s%d, s36' % S_MASKW)
            a('s_lshl_b32 s36, s36, 16')
            a('v_mov_b32 v%d, s36' % t1)
            a('v_sub_f32 v%d, 1.0, v%d' % (t1, t1))
            a('v_mul_f32 v%d, s%d, v%d' % (t1, S_NEGBIG, t1))
            a('v_fma_f32 v%d, v%d, s%d, v%d' % (TQ, t0, S_C, t1))

        for blk in range(4):
            if blk == 2:
                tree_score()
            for k in range(4):
                if blk == 3 or k == 0 or k == 2:
                    kk = k if blk == 3 else k + 1
                    a.wait_vm('v%d_%d' % (blk, 2 * kk + 1))
                for e in range(8):
                    x = VB[blk] + 4 * (2 * k) + (e >> 1)
                    y = VB[blk] + 4 * (2 * k + 1) + (e >> 1)
                    a('v_perm_b32 v%d, v%d, v%d, s%d' % (TMP + 4 * e + k, y, x, S_SEL_HI if e & 1 else S_SEL_LO))
            if blk == 3:
                self.stamp()
            for e in range(8):
                ep = e & 3
                first = blk == 0 and e < 4
                a('v_mfma_f32_16x16x32_bf16 %s, %s, %s, %s' % (
                    vr(ACC + 4 * ep), vr(TMP + 4 * e), vr((PLO if e < 4 else PHI) + 4 * blk),
                    '0' if first else vr(ACC + 4 * ep)))
        for ep in range(4):
            a('ds_write_b128 v%d, %s offset:%d' % (VLW, vr(ACC + 4 * ep), LDS_ACC + 1056 * ep))
        a('s_waitcnt lgkmcnt(0)')
        a('s_barrier')
        R = TMP
        M4 = TMP + 16
        L4 = TMP + 20
        a('ds_read_b128 %s, v%d offset:%d' % (vr(M4), VLDS, LDS_M))
        for w in range(4):
            a('ds_read_b128 %s, v%d offset:%d' % (vr(R + 4 * w), VLR, LDS_ACC + 4224 * w))
        a('ds_read_b128 %s, v%d offset:%d' % (vr(L4), VLDS, LDS_M + 16))
        a('s_cmp_lg_u32 s%d, 0' % S_FAST)
        a('s_waitcnt lgkmcnt(5)')
        a('v_max3_f32 v%d, v%d, v%d, v%d' % (t0, M4, M4 + 1, M4 + 2))
        a('v_max_f32 v%d, v%d, v%d' % (MG, t0, M4 + 3))
        for w in range(4):
            a('v_sub_f32 v%d, v%d, v%d' % (M4 + w, M4 + w, MG))
        for w in range(4):
            a('v_exp_f32 v%d, v%d' % (M4 + w, M4 + w))
        a('s_waitcnt lgkmcnt(3)')
        for r in range(4):
            a('v_mul_f32 v%d, v%d, v%d' % (R + r, R + r, M4))
        for r in range(4):
            a('v_fmac_f32 v%d, v%d, v%d' % (R + r, R + 4 + r, M4 + 1))
        a('s_waitcnt lgkmcnt(0)')
        for r in range(4):
            a('v_fmac_f32 v%d, v%d, v%d' % (R + r, R + 8 + r, M4 + 2))
        a('v_mul_f32 v%d, v%d, v%d' % (MG + 2, L4, M4))
        for r in range(4):
            a('v_fma_f32 v%d, v%d, v%d, v%d' % (G + 2 * r, R + 12 + r, M4 + 3, R + r))
            if r < 3:
                a('v_fmac_f32 v%d, v%d, v%d' % (MG + 2, L4 + 1 + r, M4 + 1 + r))
        a('s_cbranch_scc0 L_slow')
        out_stores('')
        a.label('L_back')
        in_loads()
        self.stamp()
        a('s_mov_b32 s%d, 0x%x' % (S_CNT, o.spin))
        if o.prof:
            a('s_mov_b32 s98, s%d' % S_FAST)
            a('s_waitcnt vmcnt(0)')
            self.stamp()
        a.label('L_chk')
        a('s_waitcnt vmcnt(0)')
        tag_check()
        a('s_cbranch_vccz L_ok')
        a('s_mov_b64 exec, vcc')
        in_loads(False)
        a('s_mov_b64 exec, -1')
        a('s_sub_u32 s%d, s%d, 1' % (S_CNT, S_CNT))
        a('s_cbranch_scc0 L_chk')
        a('s_branch L_end')
        a.label('L_slow')
        out_stores(' sc1', False)
        a('s_branch L_back')
        a.label('L_ok')
        self.stamp()
        a('v_max3_f32 v%d, v%d, v%d, v%d' % (t0, ML, ML + 4, TQ))
        a('v_max_f32_dpp v%d, v%d, v%d row_ror:8 row_mask:0xf bank_mask:0xf' % (t0, t0, t0))
        a('v_max_f32_dpp v%d, v%d, v%d row_ror:4 row_mask:0xf bank_mask:0xf' % (t0, t0, t0))
        self.swap_red('v_max_f32', t0, t1)
        for x in (ML, ML + 4, TQ):
            a('v_sub_f32 v%d, v%d, v%d' % (x, x, t0))
        for x in (ML, ML + 4, TQ):
            a('v_exp_f32 v%d, v%d' % (x, x))
        LS, LT = ML + 2, ML + 3
        a('v_mul_f32 v%d, v%d, v%d' % (LS, ML, ML + 2))
        a('v_mul_f32 v%d, v%d, v%d' % (OB, OB, ML))
        a('v_mul_f32 v%d, v%d, v%d' % (OB + 2, OB + 2, ML))
        a('v_fmac_f32 v%d, v%d, v%d' % (LS, ML + 4, ML + 6))
        a('v_fmac_f32 v%d, v%d, v%d' % (OB, OB + 4, ML + 4))
        a('v_fmac_f32 v%d, v%d, v%d' % (OB + 2, OB + 6, ML + 4))
        a('v_mov_b32 v%d, v%d' % (LT, LS))
        a('v_mul_f32 v%d, v%d, v%d' % (TV, TV, TQ))
        a('v_permlane32_swap_b32 v%d, v%d' % (OB, OB + 2))
        a('v_permlane32_swap_b32 v%d, v%d' % (LS, LT))
        a('v_add_f32 v%d, v%d, v%d' % (OB, OB, OB + 2))
        a('v_add_f32 v%d, v%d, v%d' % (LS, LS, LT))
        a('v_mov_b32 v%d, v%d' % (t1, OB))
        a('v_mov_b32 v%d, v%d' % (LT, LS))
        a('v_permlane16_swap_b32 v%d, v%d' % (OB, t1))
        a('v_permlane16_swap_b32 v%d, v%d' % (LS, LT))
        a('v_add_f32 v%d, v%d, v%d' % (OB, OB, t1))
        a('v_add_f32 v%d, v%d, v%d' % (LS, LS, LT))
        for sh in (8, 4):
            a('v_add_f32_dpp v%d, v%d, v%d row_ror:%d row_mask:0xf bank_mask:0xf' % (LS, LS, LS, sh))
            a('v_add_f32_dpp v%d, v%d, v%d row_ror:%d row_mask:0xf bank_mask:0xf' % (OB, OB, OB, sh))
        a('v_add_f32 v%d, v%d, v%d' % (LS, LS, TQ))
        a('v_add_f32 v%d, v%d, v%d' % (OB, OB, TV))
        a('v_rcp_f32 v%d, v%d' % (LS, LS))
        a('v_mul_f32 v%d, v%d, v%d' % (OB, OB, LS))
        a('v_cvt_pk_bf16_f32 v%d, v%d, v%d' % (OB, OB, OB))
        a('s_mov_b64 exec, s[%d:%d]' % (S_FIN, S_FIN + 1))
        a('global_store_short v%d, v%d, s[16:17]' % (COUT, OB))
        a('s_or_b32 s36, s%d, s3' % S_SPLIT)
        a('s_cmp_lg_u32 s36, 0')
        a('s_cbranch_scc1 L_done')
        a('s_mov_b64 exec, 1')
        a('s_lshl_b32 s38, s%d, 7' % S_GROUP)
        a('s_add_u32 s38, s38, 0x%x' % EPOCH_OFF)
        a('v_mov_b32 v%d, s38' % t0)
        a('buffer_store_dword v%d, v%d, s[%d:%d], 0 offen sc1' % (G + 1, t0, SRD_W, SRD_W + 3))
        a.label('L_done')
        self.stamp()
        self.dump_stamps(t0)
        a.label('L_end')
        a('s_endpgm')

    def build(self):
        o = self.o
        main = NAME + '_kernel'
        head = ['; tree-attention decode: split-KV flash decoding with an in-launch tagged combine (own generator)']
        head.append('; @launch grid=(256,1,1) block=(256,1,1) lds=%d' % max(LDS_TOTAL, o.lds))
        head += ['.amdgcn_target "amdgcn-amd-amdhsa--gfx950"', '.text']
        a = self.a
        a.raw('.globl %s' % main)
        a.raw('.p2align %d' % o.align)
        a.raw('.type %s,@function' % main)
        self.main_kernel(main)
        tail = ['.section .rodata,"a"', '.p2align 6', '.amdhsa_kernel %s' % main,
                '  .amdhsa_next_free_vgpr 256',
                '  .amdhsa_next_free_sgpr 102',
                '  .amdhsa_accum_offset 256',
                '  .amdhsa_group_segment_fixed_size 0',
                '  .amdhsa_kernarg_size 72',
                '  .amdhsa_user_sgpr_count 2',
                '  .amdhsa_user_sgpr_kernarg_segment_ptr 1',
                '  .amdhsa_system_sgpr_workgroup_id_x 1',
                '.end_amdhsa_kernel']
        return '\n'.join(head) + '\n' + a.text() + '\n'.join(tail) + '\n'


def main():
    p = argparse.ArgumentParser()
    p.add_argument('--ntk', type=int, default=0)
    p.add_argument('--ntv', type=int, default=0)
    p.add_argument('--prof', type=int, default=0)
    p.add_argument('--lds', type=int, default=0)
    p.add_argument('--align', type=int, default=12)
    p.add_argument('--pub', type=int, default=4)
    p.add_argument('--prime', type=int, default=1)
    p.add_argument('--fast', type=int, default=1)
    p.add_argument('--spin', type=int, default=200000)
    p.add_argument('-o', default='var/f3.s')
    args = p.parse_args()
    g = Gen(args)
    txt = g.build()
    open(args.o, 'w').write(txt)
    print('wrote', args.o, 'max outstanding', g.a.maxout, 'lines', txt.count('\n'), file=sys.stderr)


if __name__ == '__main__':
    main()
```

```python
import argparse
import math
import struct
import sys

from asmlib import Asm

NAME = 'standalone__tree_speculative_verify_tree_attention_over_candidate_token_tree__decode'


def f32(x):
    return '0x%08x' % struct.unpack('<I', struct.pack('<f', x))[0]


C_SCALE = (128.0 ** -0.5) * math.log2(math.e)
NEG_BIG = -1.0e9 * math.log2(math.e)

CSTRIDE = 4224
GSTRIDE = 32 * CSTRIDE
XT_OFF = 4096
EPOCH_OFF = CSTRIDE + 4096
PROF_OFF = 3 << 20
WS_RECORDS = 8 * GSTRIDE

LDS_M = 0
LDS_F = 256
LDS_ACC = 512
LDS_TOTAL = 512 + 4 * 4224

S_GROUP, S_SPLIT = 22, 23
SRD_K, SRD_V, SRD_W = 24, 28, 32
S_OFF = 40
S_SEL_LO, S_SEL_HI = 48, 49
S_C = 50
S_TAG = 51
S_MASKLO = 52
S_MASKW = 54
S_GB = 55
S_CNT = 57
S_EPOCH = 59
S_ROW = 61
S_TS = 64
S_XCC = 99
S_FAST = 100


def soff(t):
    return '0' if t == 0 else 's%d' % (S_OFF + t)


def vr(base, n=4):
    return 'v[%d:%d]' % (base, base + n - 1)


class Gen:
    def __init__(self, args):
        self.o = args
        self.a = Asm()

    def stamp(self, col):
        if self.o.prof:
            self.a('s_memrealtime s[%d:%d]' % (S_TS + 2 * col, S_TS + 2 * col + 1))

    def dump_stamps(self, vt, cols):
        if not self.o.prof:
            return
        a = self.a
        a('s_waitcnt lgkmcnt(0)')
        a('s_mul_i32 s36, s2, 5')
        a('s_add_u32 s36, s36, s3')
        a('s_lshl_b32 s36, s36, 6')
        a('s_add_u32 s36, s36, 0x%x' % PROF_OFF)
        a('s_mov_b64 exec, 1')
        a('v_mov_b32 v%d, s36' % vt)
        for i, r in [(i, S_TS + 2 * i) for i in cols] + [(14, S_FAST), (15, S_CNT)]:
            a('v_mov_b32 v%d, s%d' % (vt + 1, r))
            a('buffer_store_dword v%d, v%d, s[%d:%d], 0 offen offset:%d' % (vt + 1, vt, SRD_W, SRD_W + 3, 4 * i),
              count=False)
            a('s_waitcnt vmcnt(0)')

    def swap_red(self, op, x, t):
        a = self.a
        a('v_mov_b32 v%d, v%d' % (t, x))
        a('v_permlane16_swap_b32 v%d, v%d' % (x, t))
        a('%s v%d, v%d, v%d' % (op, x, x, t))
        a('v_mov_b32 v%d, v%d' % (t, x))
        a('v_permlane32_swap_b32 v%d, v%d' % (x, t))
        a('%s v%d, v%d, v%d' % (op, x, x, t))

    def srd_w(self):
        a = self.a
        a('s_mov_b32 s%d, s20' % SRD_W)
        a('s_mov_b32 s%d, s21' % (SRD_W + 1))
        a('s_mov_b32 s%d, 0x%x' % (SRD_W + 2, (4 << 20) if self.o.prof else WS_RECORDS))
        a('s_mov_b32 s%d, 0x00020000' % (SRD_W + 3))

    def main_kernel(self, label):
        o, a = self.o, self.a
        VK, VV, VQ = 1, 2, 3
        t0, t1, t2 = 4, 5, 6
        VPS = 7
        VLDS, VLW, VLR = 61, 62, 63
        Q = ACC = 8
        S = 24
        VB = [64, 96, 128, 160]
        K = 128
        PLO, PHI, TMP = 192, 208, 224
        M4, L4 = 24, 28
        G = 40

        a.label(label)
        self.stamp(0)
        a('s_load_dwordx16 s[4:19], s[0:1], 0')
        a('s_load_dwordx2 s[20:21], s[0:1], 64')
        a('s_cmp_ge_u32 s2, 256')
        a('s_cbranch_scc1 L_end')
        a('v_lshrrev_b32 v1, 6, v0')
        a('v_and_b32 v0, 63, v0')
        a('v_readfirstlane_b32 s3, v1')
        a('s_and_b32 s%d, s2, 7' % S_GROUP)
        a('s_lshr_b32 s%d, s2, 3' % S_SPLIT)
        a('s_lshl_b32 s36, s%d, 22' % S_GROUP)
        a('s_lshl_b32 s37, s%d, 17' % S_SPLIT)
        a('s_add_u32 s36, s36, s37')
        a('v_lshrrev_b32 v%d, 4, v0' % t0)
        a('v_lshlrev_b32 v%d, 4, v0' % VV)
        a('s_cmp_eq_u32 s3, 4')
        a('s_cbranch_scc1 L_cons')
        a('s_lshl_b32 s37, s3, 15')
        a('s_add_u32 s36, s36, s37')
        a('v_and_b32 v%d, 3, v0' % t1)
        a('v_bfe_u32 v%d, v0, 2, 2' % t2)
        a('v_lshl_add_u32 v%d, v%d, 2, v%d' % (t1, t1, t2))
        a('v_lshlrev_b32 v%d, 8, v%d' % (VK, t1))
        a('v_lshl_add_u32 v%d, v%d, 4, v%d' % (VK, t0, VK))
        a('v_and_b32 v%d, 7, v0' % t1)
        a('v_lshlrev_b32 v%d, 8, v%d' % (VQ, t1))
        a('v_lshl_add_u32 v%d, v%d, 4, v%d' % (VQ, t0, VQ))
        a('s_lshl_b32 s37, s%d, 11' % S_GROUP)
        a('v_add_u32 v%d, s37, v%d' % (VQ, VQ))
        for t in range(1, 8):
            a('s_movk_i32 s%d, 0x%x' % (S_OFF + t, t * 4096))
        for srd in (SRD_K, SRD_V):
            a('s_mov_b32 s%d, 0x8000' % (srd + 2))
            a('s_mov_b32 s%d, 0x00020000' % (srd + 3))
        a('s_waitcnt lgkmcnt(0)')
        a('s_add_u32 s%d, s6, s36' % SRD_K)
        a('s_addc_u32 s%d, s7, 0' % (SRD_K + 1))
        self.stamp(1)

        def kload(t):
            for j in range(4):
                a('buffer_load_dwordx4 %s, v%d, s[%d:%d], %s offen offset:%d' % (
                    vr(K + 16 * t + 4 * j), VK, SRD_K, SRD_K + 3, soff(t), 64 * j), tag='k%d_%d' % (t, j))

        def vload4(blk, half):
            for i in range(4 * half, 4 * half + 4):
                a('buffer_load_dwordx4 %s, v%d, s[%d:%d], %s offen offset:%d' % (
                    vr(VB[blk] + 4 * i), VV, SRD_V, SRD_V + 3, soff(2 * blk + (i >> 2)), 1024 * (i & 3)),
                  tag='v%d_%d' % (blk, i))

        def kmfma(t):
            a.wait_vm('q3' if t == 0 else 'k%d_3' % t)
            for j in range(4):
                a('v_mfma_f32_16x16x32_bf16 %s, %s, %s, %s' % (
                    vr(S + 4 * t), vr(K + 16 * t + 4 * j), vr(Q + 4 * j), '0' if j == 0 else vr(S + 4 * t)))

        def f0():
            a('s_add_u32 s%d, s8, s36' % SRD_V)
            a('s_addc_u32 s%d, s9, 0' % (SRD_V + 1))
            a('s_lshl_b32 s36, s3, 2')
            a('v_lshl_add_u32 v%d, v0, 5, s36' % VLDS)

        def f1():
            self.srd_w()
            a('s_mul_i32 s36, s3, 4224')
            a('v_add_u32 v%d, s36, v%d' % (VLW, VV))

        def f2():
            a('v_and_b32 v%d, 3, v0' % t0)
            a('v_mul_u32_u24 v%d, 1056, v%d' % (VLR, t0))

        def f3():
            a('v_bfe_u32 v%d, v0, 2, 1' % t0)
            a('v_lshl_add_u32 v%d, v%d, 7, v%d' % (VLR, t0, VLR))

        def f4():
            a('v_lshrrev_b32 v%d, 3, v0' % t2)
            a('v_lshl_add_u32 v%d, v%d, 4, v%d' % (VLR, t2, VLR))

        def f5():
            a('s_lshl_b32 s37, s3, 8')
            a('v_add_u32 v%d, s37, v%d' % (VLR, VLR))

        def f6():
            a('s_mov_b32 s%d, 0x05040100' % S_SEL_LO)
            a('s_mov_b32 s%d, 0x07060302' % S_SEL_HI)
            a('s_mov_b32 s%d, 0x00ff00ff' % S_MASKLO)
            a('s_mov_b32 s%d, 0x00ff00ff' % (S_MASKLO + 1))
            a('v_mul_u32_u24 v%d, %d, v%d' % (VPS, 4 * CSTRIDE, t2))

        def f7():
            a('s_mov_b32 s%d, %s' % (S_C, f32(C_SCALE)))
            a('s_mul_i32 s37, s%d, %d' % (S_GROUP, GSTRIDE))
            a('s_add_u32 s36, s36, s37')
            a('s_lshl_b32 s37, s%d, 7' % S_SPLIT)
            a('s_add_u32 s36, s36, s37')
            a('v_lshl_add_u32 v%d, v%d, 4, v%d' % (VPS, t1, VPS))

        def f8():
            a('v_add_u32 v%d, s36, v%d' % (VPS, VPS))

        kload(0)
        f0()
        for j in range(4):
            a('global_load_dwordx4 %s, v%d, s[4:5] offset:%d' % (vr(Q + 4 * j), VQ, 64 * j), tag='q%d' % j)
        fl = [f1, f2, f3, f4, f5, f6, f7]
        for t in range(1, 8):
            fl[t - 1]()
            kload(t)
        f8()
        vload4(0, 0)
        self.stamp(2)
        kmfma(0)
        kmfma(1)
        vload4(0, 1)
        kmfma(2)
        kmfma(3)
        vload4(1, 0)
        kmfma(4)
        vload4(1, 1)
        kmfma(5)
        a('v_max3_f32 v%d, v%d, v%d, v%d' % (t0, S, S + 1, S + 2))
        a('v_max3_f32 v%d, v%d, v%d, v%d' % (t1, S + 3, S + 4, S + 5))
        idx, flip = 6, 0
        while idx < 20:
            d = (t0, t1)[flip]
            a('v_max3_f32 v%d, v%d, v%d, v%d' % (d, d, S + idx, S + idx + 1))
            idx += 2
            flip ^= 1
        vload4(2, 0)
        kmfma(6)
        kmfma(7)
        self.stamp(3)
        vload4(2, 1)
        while idx < 32:
            d = (t0, t1)[flip]
            a('v_max3_f32 v%d, v%d, v%d, v%d' % (d, d, S + idx, S + idx + 1))
            idx += 2
            flip ^= 1
        a('v_max_f32 v%d, v%d, v%d' % (t0, t0, t1))
        self.swap_red('v_max_f32', t0, t1)
        MC = TMP + 8
        a('v_mul_f32 v%d, s%d, v%d' % (MC, S_C, t0))
        for i in range(32):
            a('v_fma_f32 v%d, v%d, s%d, -v%d' % (S + i, S + i, S_C, MC))
        vload4(3, 0)
        for i in range(32):
            a('v_exp_f32 v%d, v%d' % (S + i, S + i))
        vload4(3, 1)
        self.stamp(4)
        for r in range(4):
            a('v_mov_b32 v%d, 0x3f803f80' % (TMP + 4 + r))
        for i in range(16):
            a('v_cvt_pk_bf16_f32 v%d, v%d, v%d' % (S + 2 * i, S + 2 * i, S + 2 * i + 1))
        for i in range(16):
            a('v_cndmask_b32 v%d, 0, v%d, s[%d:%d]' % (PLO + i, S + 2 * i, S_MASKLO, S_MASKLO + 1))
        for b in range(4):
            a('v_mfma_f32_16x16x32_bf16 %s, %s, %s, %s' % (
                vr(TMP + 12), vr(TMP + 4), vr(PLO + 4 * b), '0' if b == 0 else vr(TMP + 12)))
        for i in range(16):
            a('v_cndmask_b32 v%d, v%d, 0, s[%d:%d]' % (PHI + i, S + 2 * i, S_MASKLO, S_MASKLO + 1))
        a('s_mov_b64 exec, 0xff')
        a('ds_write2_b32 v%d, v%d, v%d offset0:%d offset1:%d' % (VLDS, MC, TMP + 12, LDS_M // 4, LDS_M // 4 + 4))
        a('s_mov_b64 exec, -1')
        a('v_lshlrev_b32 v%d, 5, v%d' % (VLDS, t2))
        self.stamp(5)

        def mid_barrier():
            a('s_waitcnt lgkmcnt(0)')
            a('s_barrier')
            a('ds_read_b128 %s, v%d offset:%d' % (vr(M4), VLDS, LDS_M))
            a('ds_read_b128 %s, v%d offset:%d' % (vr(L4), VLDS, LDS_M + 16))
            a('ds_read_b64 %s, v%d offset:%d' % (vr(G + 2, 2), VLDS, LDS_F))
            self.stamp(6)

        def factors():
            a('s_waitcnt lgkmcnt(0)')
            a('v_max3_f32 v%d, v%d, v%d, v%d' % (t0, M4, M4 + 1, M4 + 2))
            a('v_readfirstlane_b32 s%d, v%d' % (S_FAST, G + 2))
            a('v_max_f32 v%d, v%d, v%d' % (t0, t0, M4 + 3))
            for w in range(4):
                a('v_sub_f32 v%d, v%d, v%d' % (M4 + w, M4 + w, t0))
            for w in range(4):
                a('v_exp_f32 v%d, v%d' % (M4 + w, M4 + w))
            a('v_mul_f32 v%d, v%d, v%d' % (t1, L4, M4))
            for w in range(1, 4):
                a('v_fmac_f32 v%d, v%d, v%d' % (t1, L4 + w, M4 + w))
            a('v_rcp_f32 v%d, v%d' % (L4, t1))
            a('v_log_f32 v%d, v%d' % (t1, t1))
            for w in range(4):
                a('v_mul_f32 v%d, v%d, v%d' % (M4 + w, M4 + w, L4))
            a('v_add_f32 v%d, v%d, v%d' % (G + 2, t0, t1))

        for blk in range(4):
            if blk == o.mid:
                mid_barrier()
            if blk == o.mid + 1:
                factors()
            for k in range(4):
                if blk == 3 or k == 0 or k == 2:
                    kk = k if blk == 3 else k + 1
                    a.wait_vm('v%d_%d' % (blk, 2 * kk + 1))
                for e in range(8):
                    x = VB[blk] + 4 * (2 * k) + (e >> 1)
                    y = VB[blk] + 4 * (2 * k + 1) + (e >> 1)
                    a('v_perm_b32 v%d, v%d, v%d, s%d' % (TMP + 4 * e + k, y, x, S_SEL_HI if e & 1 else S_SEL_LO))
            if blk == 3:
                self.stamp(7)
            for e in range(8):
                ep = e & 3
                first = blk == 0 and e < 4
                a('v_mfma_f32_16x16x32_bf16 %s, %s, %s, %s' % (
                    vr(ACC + 4 * ep), vr(TMP + 4 * e), vr((PLO if e < 4 else PHI) + 4 * blk),
                    '0' if first else vr(ACC + 4 * ep)))
        for ep in range(4):
            a('ds_write_b128 v%d, %s offset:%d' % (VLW, vr(ACC + 4 * ep), LDS_ACC + 1056 * ep))
        a('s_waitcnt lgkmcnt(0)')
        a('s_barrier')
        R = TMP
        for w in range(4):
            a('ds_read_b128 %s, v%d offset:%d' % (vr(R + 4 * w), VLR, LDS_ACC + 4224 * w))
        a('s_cmp_lg_u32 s%d, 0' % S_FAST)
        for w in range(4):
            a('s_waitcnt lgkmcnt(%d)' % (3 - w))
            sel = 'op_sel:[0,%d,0] op_sel_hi:[1,%d,1]' % (w & 1, w & 1)
            for hf in range(2):
                if w == 0:
                    a('v_pk_mul_f32 %s, %s, %s op_sel:[0,0] op_sel_hi:[1,0]' % (
                        vr(R + 2 * hf, 2), vr(R + 2 * hf, 2), vr(M4, 2)))
                else:
                    a('v_pk_fma_f32 %s, %s, %s, %s %s' % (
                        vr(R + 2 * hf, 2), vr(R + 4 * w + 2 * hf, 2), vr(M4 + (w & 2), 2), vr(R + 2 * hf, 2), sel))
        a('v_cvt_pk_bf16_f32 v%d, v%d, v%d' % (G, R, R + 1))
        a('v_cvt_pk_bf16_f32 v%d, v%d, v%d' % (G + 1, R + 2, R + 3))
        a('s_cbranch_scc0 L_slow')
        a('buffer_store_dwordx4 %s, v%d, s[%d:%d], 0 offen' % (vr(G), VPS, SRD_W, SRD_W + 3))
        if o.prof:
            a.label('L_pdone')
            self.stamp(8)
            a('s_mov_b32 s%d, 0x%x' % (S_CNT, o.spin))
            self.dump_stamps(t0, range(9))
        a('s_endpgm')
        a.label('L_slow')
        a('buffer_store_dwordx4 %s, v%d, s[%d:%d], 0 offen sc1' % (vr(G), VPS, SRD_W, SRD_W + 3))
        if o.prof:
            a('s_branch L_pdone')
        a.label('L_end')
        a('s_endpgm')
        self.consumer()

    def consumer(self):
        o, a = self.o, self.a
        VV, t0, t1, t2 = 2, 4, 5, 6
        CO, TQ, TK, TV, COUT, XA, XL, VF = 7, 8, 9, 10, 11, 12, 13, 14
        FT = 16
        IN = 20
        U = 36
        W = 52
        A = 56
        LS, LT, WT = 60, 61, 62
        a.raw('.p2align 6')
        a.label('L_cons')
        a.flush_hazards()
        a('s_setprio 3')
        a('s_lshr_b32 s36, s%d, 2' % S_SPLIT)
        a('s_and_b32 s39, s%d, 3' % S_SPLIT)
        a('s_lshl_b32 s37, s%d, 3' % S_GROUP)
        a('s_add_u32 s37, s37, s36')
        a('s_lshl_b32 s%d, s37, 8' % S_ROW)
        a('s_mul_i32 s%d, s%d, %d' % (S_GB, S_GROUP, GSTRIDE))
        a('s_add_u32 s96, s%d, %d' % (S_GB, EPOCH_OFF))
        a('v_lshlrev_b32 v%d, 2, v0' % t2)
        a('v_add_u32 v%d, s%d, v%d' % (TQ, S_ROW, t2))
        a('s_lshl_b32 s38, s%d, 8' % S_GROUP)
        a('v_add_u32 v%d, s38, v%d' % (TK, t2))
        a('v_and_b32 v%d, 7, v0' % t1)
        a('v_lshl_add_u32 v%d, v%d, 3, v%d' % (t1, t0, t1))
        a('s_lshl_b32 s36, s39, 5')
        a('v_add_lshl_u32 v%d, v%d, s36, 1' % (t1, t1))
        a('v_add_u32 v%d, s%d, v%d' % (COUT, S_ROW, t1))
        a('v_add_u32 v%d, s38, v%d' % (TV, t1))
        a('s_waitcnt lgkmcnt(0)')
        a('s_load_dword s%d, s[20:21], s96' % S_EPOCH)
        a('s_load_dword s%d, s[14:15], 0' % S_MASKW)
        a('global_load_dword v%d, v%d, s[4:5]' % (TQ, TQ), count=False)
        a('global_load_dword v%d, v%d, s[10:11]' % (TK, TK), count=False)
        a('global_load_ushort v%d, v%d, s[12:13]' % (TV, TV), count=False)
        self.srd_w()
        a('s_getreg_b32 s%d, hwreg(HW_REG_XCC_ID, 0, 4)' % S_XCC)
        a('s_mul_i32 s36, s%d, %d' % (S_SPLIT, CSTRIDE))
        a('s_add_u32 s36, s36, s%d' % S_GB)
        a('v_add_u32 v%d, s36, v%d' % (CO, VV))
        a('s_add_u32 s37, s%d, %d' % (S_GB, XT_OFF))
        a('v_and_b32 v%d, 31, v0' % XA)
        a('v_lshl_add_u32 v%d, v%d, 2, s37' % (XA, XA))
        a('v_lshlrev_b32 v%d, 5, v0' % VF)
        a('s_lshl_b32 s38, s%d, 2' % S_SPLIT)
        a('s_add_u32 s37, s37, s38')
        a('s_waitcnt lgkmcnt(0)')
        a('s_mul_i32 s%d, s%d, 0x9e3779b1' % (S_TAG, S_EPOCH))
        a('s_add_u32 s%d, s%d, 0x7f4a7c15' % (S_TAG, S_TAG))
        a('s_add_u32 s%d, s%d, s%d' % (S_XCC, S_XCC, S_TAG))
        a('v_mov_b32 v%d, s%d' % (XL, S_XCC))
        a('s_mov_b64 exec, 1')
        a('buffer_store_dword v%d, off, s[%d:%d], s37' % (XL, SRD_W, SRD_W + 3), count=False)
        a('s_mov_b64 exec, -1')
        a('v_mov_b32 v%d, s%d' % (FT + 1, S_TAG))
        a('s_lshr_b32 s36, s%d, 2' % S_GROUP)
        a('s_lshl_b32 s36, s36, 4')
        a('s_lshr_b32 s36, s%d, s36' % S_MASKW)
        a('s_lshl_b32 s36, s36, 16')
        a('s_waitcnt vmcnt(0)')
        self.stamp(12)
        a('v_lshlrev_b32 v%d, 16, v%d' % (t0, TQ))
        a('v_lshlrev_b32 v%d, 16, v%d' % (t1, TK))
        a('v_and_b32 v%d, 0xffff0000, v%d' % (TQ, TQ))
        a('v_and_b32 v%d, 0xffff0000, v%d' % (TK, TK))
        a('v_mul_f32 v%d, v%d, v%d' % (t0, t0, t1))
        a('v_fmac_f32 v%d, v%d, v%d' % (t0, TQ, TK))
        a('v_lshlrev_b32 v%d, 16, v%d' % (TV, TV))
        for sh in (8, 4, 2, 1):
            a('v_add_f32_dpp v%d, v%d, v%d row_ror:%d row_mask:0xf bank_mask:0xf' % (t0, t0, t0, sh))
        self.swap_red('v_add_f32', t0, t1)
        a('v_mov_b32 v%d, s36' % t1)
        a('v_sub_f32 v%d, 1.0, v%d' % (t1, t1))
        a('v_mul_f32 v%d, %s, v%d' % (t1, f32(NEG_BIG), t1))
        a('v_mov_b32 v%d, %s' % (t2, f32(C_SCALE)))
        a('v_fma_f32 v%d, v%d, v%d, v%d' % (TQ, t0, t2, t1))
        a('s_mov_b32 s%d, 0x00ff00ff' % S_MASKLO)
        a('s_mov_b32 s%d, 0x00ff00ff' % (S_MASKLO + 1))
        a('s_mov_b32 s97, 1')
        if o.dry:
            a('s_branch L_ok')
        a.label('L_dry')
        a.flush_hazards()
        a('s_mov_b32 s97, 0')
        a('s_mov_b32 s%d, %d' % (S_CNT, o.xtry - 1))
        a.label('L_xt')
        a('buffer_load_dword v%d, v%d, s[%d:%d], 0 offen sc1' % (XL, XA, SRD_W, SRD_W + 3), count=False)
        a('s_waitcnt vmcnt(0)')
        a('v_cmp_ne_u32 vcc, s%d, v%d' % (S_XCC, XL))
        a('s_mov_b32 s%d, %d' % (S_FAST, o.fast))
        a('s_cbranch_vccz L_xok')
        a('s_mov_b32 s%d, 0' % S_FAST)
        a('s_sub_u32 s%d, s%d, 1' % (S_CNT, S_CNT))
        a('s_cbranch_scc0 L_xt')
        a.label('L_xok')
        self.stamp(13)
        a('v_mov_b32 v%d, s%d' % (FT, S_FAST))
        a('s_mov_b64 exec, 0xff')
        a('ds_write_b64 v%d, %s offset:%d' % (VF, vr(FT, 2), LDS_F))
        a('s_mov_b64 exec, -1')
        a('s_mov_b32 s%d, 0x%x' % (S_CNT, o.spin))
        a('s_waitcnt lgkmcnt(0)')
        a('s_barrier')

        def in_loads():
            for i in range(4):
                a('buffer_load_dwordx4 %s, v%d, s[%d:%d], 0 offen offset:%d sc1' % (
                    vr(IN + 4 * i), CO, SRD_W, SRD_W + 3, 1024 * i), count=False)

        in_loads()
        a('s_barrier')
        self.stamp(9)
        a.label('L_chk')
        a('s_waitcnt vmcnt(0)')
        a('v_xor_b32 v%d, s%d, v%d' % (t0, S_TAG, IN + 3))
        for i in range(1, 4):
            a('v_bitop3_b32 v%d, v%d, s%d, v%d bitop3:0xbe' % (t0, IN + 4 * i + 3, S_TAG, t0))
        a('v_cmp_ne_u32 vcc, 0, v%d' % t0)
        a('s_cbranch_vccz L_ok')
        a('s_mov_b64 exec, vcc')
        in_loads()
        a('s_mov_b64 exec, -1')
        a('s_sub_u32 s%d, s%d, 1' % (S_CNT, S_CNT))
        a('s_cbranch_scc0 L_chk')
        a('s_endpgm')
        a.label('L_ok')
        a.flush_hazards()
        self.stamp(10)
        unp = []
        for i in range(4):
            for hf in range(2):
                unp.append('v_lshlrev_b32 v%d, 16, v%d' % (U + 4 * i + 2 * hf, IN + 4 * i + hf))
                unp.append('v_and_b32 v%d, 0xffff0000, v%d' % (U + 4 * i + 2 * hf + 1, IN + 4 * i + hf))

        def fill(n):
            for _ in range(n):
                if unp:
                    a(unp.pop(0))
        a('v_max3_f32 v%d, v%d, v%d, v%d' % (t0, IN + 2, IN + 6, TQ))
        a('v_max3_f32 v%d, v%d, v%d, v%d' % (t0, IN + 10, IN + 14, t0))
        fill(2)
        a('v_max_f32_dpp v%d, v%d, v%d row_ror:8 row_mask:0xf bank_mask:0xf' % (t0, t0, t0))
        a('v_mov_b32 v%d, v%d' % (t1, t0))
        fill(2)
        a('v_permlane16_swap_b32 v%d, v%d' % (t0, t1))
        a('v_max_f32 v%d, v%d, v%d' % (t0, t0, t1))
        a('v_mov_b32 v%d, v%d' % (t1, t0))
        fill(2)
        a('v_permlane32_swap_b32 v%d, v%d' % (t0, t1))
        a('v_max_f32 v%d, v%d, v%d' % (t0, t0, t1))
        for i in range(4):
            a('v_sub_f32 v%d, v%d, v%d' % (W + i, IN + 4 * i + 2, t0))
        a('v_sub_f32 v%d, v%d, v%d' % (WT, TQ, t0))
        for x in (W, W + 1, W + 2, W + 3, WT):
            a('v_exp_f32 v%d, v%d' % (x, x))
            fill(2)
        fill(16)
        a('v_add_f32 v%d, v%d, v%d' % (LS, W, W + 1))
        a('v_add_f32 v%d, v%d, v%d' % (LT, W + 2, W + 3))
        for i in range(4):
            sel = 'op_sel:[0,%d,0] op_sel_hi:[1,%d,1]' % (i & 1, i & 1)
            for hf in range(2):
                if i == 0:
                    a('v_pk_mul_f32 %s, %s, %s op_sel:[0,0] op_sel_hi:[1,0]' % (
                        vr(A + 2 * hf, 2), vr(U + 2 * hf, 2), vr(W, 2)))
                else:
                    a('v_pk_fma_f32 %s, %s, %s, %s %s' % (
                        vr(A + 2 * hf, 2), vr(U + 4 * i + 2 * hf, 2), vr(W + (i & 2), 2), vr(A + 2 * hf, 2), sel))
            if i == 0:
                a('v_add_f32 v%d, v%d, v%d' % (LS, LS, LT))
            if i == 1:
                a('v_add_f32_dpp v%d, v%d, v%d row_ror:8 row_mask:0xf bank_mask:0xf' % (LS, LS, LS))
            if i == 2:
                a('v_mov_b32 v%d, v%d' % (LT, LS))
        a('v_permlane16_swap_b32 v%d, v%d' % (LS, LT))
        a('v_add_f32 v%d, v%d, v%d' % (LS, LS, LT))
        a('v_permlane32_swap_b32 v%d, v%d' % (A, A + 2))
        a('v_permlane32_swap_b32 v%d, v%d' % (A + 1, A + 3))
        a('v_mov_b32 v%d, v%d' % (LT, LS))
        a('v_pk_add_f32 %s, %s, %s' % (vr(A, 2), vr(A, 2), vr(A + 2, 2)))
        a('s_cmp_lg_u32 s97, 0')
        a('v_permlane32_swap_b32 v%d, v%d' % (LS, LT))
        a('v_permlane16_swap_b32 v%d, v%d' % (A, A + 1))
        a('v_add_f32 v%d, v%d, v%d' % (LS, LS, LT))
        a('v_add_f32 v%d, v%d, v%d' % (LS, LS, WT))
        a('v_add_f32 v%d, v%d, v%d' % (A, A, A + 1))
        a('v_rcp_f32 v%d, v%d' % (LS, LS))
        a('v_add_f32_dpp v%d, v%d, v%d row_ror:8 row_mask:0xf bank_mask:0xf' % (A, A, A))
        a('v_fmac_f32 v%d, v%d, v%d' % (A, WT, TV))
        a('v_mul_f32 v%d, v%d, v%d' % (A, A, LS))
        a('v_cvt_pk_bf16_f32 v%d, v%d, v%d' % (A, A, A))
        if o.dry:
            a('s_cbranch_scc1 L_dry')
        a('s_mov_b64 exec, s[%d:%d]' % (S_MASKLO, S_MASKLO + 1))
        a('global_store_short v%d, v%d, s[16:17]' % (COUT, A), count=False)
        a('s_cmp_lg_u32 s%d, 0' % S_SPLIT)
        a('s_cbranch_scc1 L_done')
        a('s_mov_b64 exec, 1')
        a('buffer_store_dword v%d, off, s[%d:%d], s96 sc1' % (FT + 1, SRD_W, SRD_W + 3), count=False)
        a.label('L_done')
        self.stamp(11)
        self.dump_stamps(t0, (0, 9, 10, 11, 12, 13))
        a('s_endpgm')

    def build(self):
        o = self.o
        main = NAME + '_kernel'
        head = ['; tree-attention decode: split-KV flash decoding with an in-launch tagged combine (own generator)']
        head.append('; @launch grid=(256,1,1) block=(320,1,1) lds=%d' % max(LDS_TOTAL, o.lds))
        head += ['.amdgcn_target "amdgcn-amd-amdhsa--gfx950"', '.text']
        a = self.a
        a.raw('.globl %s' % main)
        a.raw('.p2align %d' % o.align)
        a.raw('.type %s,@function' % main)
        self.main_kernel(main)
        tail = ['.section .rodata,"a"', '.p2align 6', '.amdhsa_kernel %s' % main,
                '  .amdhsa_next_free_vgpr 256',
                '  .amdhsa_next_free_sgpr 102',
                '  .amdhsa_accum_offset 256',
                '  .amdhsa_group_segment_fixed_size 0',
                '  .amdhsa_kernarg_size 72',
                '  .amdhsa_user_sgpr_count 2',
                '  .amdhsa_user_sgpr_kernarg_segment_ptr 1',
                '  .amdhsa_system_sgpr_workgroup_id_x 1',
                '.end_amdhsa_kernel']
        return '\n'.join(head) + '\n' + a.text() + '\n'.join(tail) + '\n'


def main():
    p = argparse.ArgumentParser()
    p.add_argument('--prof', type=int, default=0)
    p.add_argument('--lds', type=int, default=0)
    p.add_argument('--align', type=int, default=12)
    p.add_argument('--fast', type=int, default=1)
    p.add_argument('--mid', type=int, default=0)
    p.add_argument('--dry', type=int, default=1)
    p.add_argument('--xtry', type=int, default=4)
    p.add_argument('--spin', type=int, default=200000)
    p.add_argument('-o', default='var/f4.s')
    args = p.parse_args()
    g = Gen(args)
    txt = g.build()
    open(args.o, 'w').write(txt)
    print('wrote', args.o, 'max outstanding', g.a.maxout, 'lines', txt.count('\n'), file=sys.stderr)


if __name__ == '__main__':
    main()
```

```python
import argparse
import math
import struct
import sys

from asmlib import Asm

NAME = 'standalone__tree_speculative_verify_tree_attention_over_candidate_token_tree__decode'


def f32(x):
    return '0x%08x' % struct.unpack('<I', struct.pack('<f', x))[0]


C_SCALE = (128.0 ** -0.5) * math.log2(math.e)
NEG_BIG = -1.0e9 * math.log2(math.e)

CSTRIDE = 4224
GSTRIDE = 32 * CSTRIDE
XT_OFF = 4096
EPOCH_OFF = CSTRIDE + 4096
PROF_OFF = 3 << 20
WS_RECORDS = 8 * GSTRIDE

LDS_M = 0
LDS_F = 256
LDS_ACC = 512
LDS_TOTAL = 512 + 4 * 4224

S_GROUP, S_SPLIT = 22, 23
SRD_K, SRD_V, SRD_W = 24, 28, 32
S_OFF = 40
S_SEL_LO, S_SEL_HI = 48, 49
S_C = 50
S_TAG = 51
S_MASKLO = 52
S_MASKW = 54
S_GB = 55
S_CNT = 57
S_EPOCH = 59
S_ROW = 61
S_TS = 64
S_XCC = 99
S_FAST = 100


def soff(t):
    return '0' if t == 0 else 's%d' % (S_OFF + t)


def vr(base, n=4):
    return 'v[%d:%d]' % (base, base + n - 1)


class Gen:
    def __init__(self, args):
        self.o = args
        self.a = Asm()

    def stamp(self, col):
        if self.o.prof:
            self.a('s_memrealtime s[%d:%d]' % (S_TS + 2 * col, S_TS + 2 * col + 1))

    def dump_stamps(self, vt, cols):
        if not self.o.prof:
            return
        a = self.a
        a('s_waitcnt lgkmcnt(0)')
        a('s_mul_i32 s36, s2, 5')
        a('s_add_u32 s36, s36, s3')
        a('s_lshl_b32 s36, s36, 6')
        a('s_add_u32 s36, s36, 0x%x' % PROF_OFF)
        a('s_mov_b64 exec, 1')
        a('v_mov_b32 v%d, s36' % vt)
        for i, r in [(i, S_TS + 2 * i) for i in cols] + [(14, S_FAST), (15, S_CNT)]:
            a('v_mov_b32 v%d, s%d' % (vt + 1, r))
            a('buffer_store_dword v%d, v%d, s[%d:%d], 0 offen offset:%d' % (vt + 1, vt, SRD_W, SRD_W + 3, 4 * i),
              count=False)
            a('s_waitcnt vmcnt(0)')

    def swap_red(self, op, x, t):
        a = self.a
        a('v_mov_b32 v%d, v%d' % (t, x))
        a('v_permlane16_swap_b32 v%d, v%d' % (x, t))
        a('%s v%d, v%d, v%d' % (op, x, x, t))
        a('v_mov_b32 v%d, v%d' % (t, x))
        a('v_permlane32_swap_b32 v%d, v%d' % (x, t))
        a('%s v%d, v%d, v%d' % (op, x, x, t))

    def srd_w(self):
        a = self.a
        a('s_mov_b32 s%d, s20' % SRD_W)
        a('s_mov_b32 s%d, s21' % (SRD_W + 1))
        a('s_mov_b32 s%d, 0x%x' % (SRD_W + 2, (4 << 20) if self.o.prof else WS_RECORDS))
        a('s_mov_b32 s%d, 0x00020000' % (SRD_W + 3))

    def main_kernel(self, label):
        o, a = self.o, self.a
        VK, VV, VQ = 1, 2, 3
        t0, t1, t2 = 4, 5, 6
        VPS = 7
        VLDS, VLW, VLR = 61, 62, 63
        Q = ACC = 8
        S = 24
        VB = [64, 96, 128, 160]
        K = 128
        PLO, PHI, TMP = 192, 208, 224
        M4, L4 = 24, 28
        G = 40

        a.label(label)
        self.stamp(0)
        a('s_load_dwordx16 s[4:19], s[0:1], 0')
        a('s_load_dwordx2 s[20:21], s[0:1], 64')
        a('s_cmp_ge_u32 s2, 256')
        a('s_cbranch_scc1 L_end')
        a('v_lshrrev_b32 v1, 6, v0')
        a('v_and_b32 v0, 63, v0')
        a('v_readfirstlane_b32 s3, v1')
        a('s_and_b32 s%d, s2, 7' % S_GROUP)
        a('s_lshr_b32 s%d, s2, 3' % S_SPLIT)
        a('s_lshl_b32 s36, s%d, 22' % S_GROUP)
        a('s_lshl_b32 s37, s%d, 17' % S_SPLIT)
        a('s_add_u32 s36, s36, s37')
        a('v_lshrrev_b32 v%d, 4, v0' % t0)
        a('v_lshlrev_b32 v%d, 4, v0' % VV)
        a('s_cmp_eq_u32 s3, 4')
        a('s_cbranch_scc1 L_cons')
        a('s_lshl_b32 s37, s3, 15')
        a('s_add_u32 s36, s36, s37')
        a('v_and_b32 v%d, 3, v0' % t1)
        a('v_bfe_u32 v%d, v0, 2, 2' % t2)
        a('v_lshl_add_u32 v%d, v%d, 2, v%d' % (t1, t1, t2))
        a('v_lshlrev_b32 v%d, 8, v%d' % (VK, t1))
        a('v_lshl_add_u32 v%d, v%d, 4, v%d' % (VK, t0, VK))
        a('v_and_b32 v%d, 7, v0' % t1)
        a('v_lshlrev_b32 v%d, 8, v%d' % (VQ, t1))
        a('v_lshl_add_u32 v%d, v%d, 4, v%d' % (VQ, t0, VQ))
        a('s_lshl_b32 s37, s%d, 11' % S_GROUP)
        a('v_add_u32 v%d, s37, v%d' % (VQ, VQ))
        for t in range(1, 8):
            a('s_movk_i32 s%d, 0x%x' % (S_OFF + t, t * 4096))
        for srd in (SRD_K, SRD_V):
            a('s_mov_b32 s%d, 0x8000' % (srd + 2))
            a('s_mov_b32 s%d, 0x00020000' % (srd + 3))
        a('s_waitcnt lgkmcnt(0)')
        a('s_add_u32 s%d, s6, s36' % SRD_K)
        a('s_addc_u32 s%d, s7, 0' % (SRD_K + 1))
        self.stamp(1)

        def kload(t):
            for j in range(4):
                a('buffer_load_dwordx4 %s, v%d, s[%d:%d], %s offen offset:%d%s' % (
                    vr(K + 16 * t + 4 * j), VK, SRD_K, SRD_K + 3, soff(t), 64 * j, o.kf), tag='k%d_%d' % (t, j))

        def vload4(blk, half):
            for i in range(4 * half, 4 * half + 4):
                a('buffer_load_dwordx4 %s, v%d, s[%d:%d], %s offen offset:%d%s' % (
                    vr(VB[blk] + 4 * i), VV, SRD_V, SRD_V + 3, soff(2 * blk + (i >> 2)), 1024 * (i & 3), o.vf),
                  tag='v%d_%d' % (blk, i))

        def kmfma(t):
            a.wait_vm('q3' if t == 0 else 'k%d_3' % t)
            for j in range(4):
                a('v_mfma_f32_16x16x32_bf16 %s, %s, %s, %s' % (
                    vr(S + 4 * t), vr(K + 16 * t + 4 * j), vr(Q + 4 * j), '0' if j == 0 else vr(S + 4 * t)))

        def f0():
            a('s_add_u32 s%d, s8, s36' % SRD_V)
            a('s_addc_u32 s%d, s9, 0' % (SRD_V + 1))
            a('s_lshl_b32 s36, s3, 2')
            a('v_lshl_add_u32 v%d, v0, 5, s36' % VLDS)

        def f1():
            self.srd_w()
            a('s_mul_i32 s36, s3, 4224')
            a('v_add_u32 v%d, s36, v%d' % (VLW, VV))

        def f2():
            a('v_and_b32 v%d, 3, v0' % t0)
            a('v_mul_u32_u24 v%d, 1056, v%d' % (VLR, t0))

        def f3():
            a('v_bfe_u32 v%d, v0, 2, 1' % t0)
            a('v_lshl_add_u32 v%d, v%d, 7, v%d' % (VLR, t0, VLR))

        def f4():
            a('v_lshrrev_b32 v%d, 3, v0' % t2)
            a('v_lshl_add_u32 v%d, v%d, 4, v%d' % (VLR, t2, VLR))

        def f5():
            a('s_lshl_b32 s37, s3, 8')
            a('v_add_u32 v%d, s37, v%d' % (VLR, VLR))

        def f6():
            a('s_mov_b32 s%d, 0x05040100' % S_SEL_LO)
            a('s_mov_b32 s%d, 0x07060302' % S_SEL_HI)
            a('s_mov_b32 s%d, 0x00ff00ff' % S_MASKLO)
            a('s_mov_b32 s%d, 0x00ff00ff' % (S_MASKLO + 1))
            a('v_mul_u32_u24 v%d, %d, v%d' % (VPS, 4 * CSTRIDE, t2))

        def f7():
            a('s_mov_b32 s%d, %s' % (S_C, f32(C_SCALE)))
            a('s_mul_i32 s37, s%d, %d' % (S_GROUP, GSTRIDE))
            a('s_add_u32 s36, s36, s37')
            a('s_lshl_b32 s37, s%d, 7' % S_SPLIT)
            a('s_add_u32 s36, s36, s37')
            a('v_lshl_add_u32 v%d, v%d, 4, v%d' % (VPS, t1, VPS))

        def f8():
            a('v_add_u32 v%d, s36, v%d' % (VPS, VPS))

        kload(0)
        f0()
        for j in range(4):
            a('global_load_dwordx4 %s, v%d, s[4:5] offset:%d' % (vr(Q + 4 * j), VQ, 64 * j), tag='q%d' % j)
        fl = [f1, f2, f3, f4, f5, f6, f7]
        for t in range(1, 8):
            fl[t - 1]()
            kload(t)
        f8()
        vload4(0, 0)
        self.stamp(2)
        kmfma(0)
        kmfma(1)
        vload4(0, 1)
        kmfma(2)
        kmfma(3)
        vload4(1, 0)
        kmfma(4)
        vload4(1, 1)
        kmfma(5)
        a('v_max3_f32 v%d, v%d, v%d, v%d' % (t0, S, S + 1, S + 2))
        a('v_max3_f32 v%d, v%d, v%d, v%d' % (t1, S + 3, S + 4, S + 5))
        idx, flip = 6, 0
        while idx < 20:
            d = (t0, t1)[flip]
            a('v_max3_f32 v%d, v%d, v%d, v%d' % (d, d, S + idx, S + idx + 1))
            idx += 2
            flip ^= 1
        vload4(2, 0)
        kmfma(6)
        kmfma(7)
        self.stamp(3)
        vload4(2, 1)
        while idx < 32:
            d = (t0, t1)[flip]
            a('v_max3_f32 v%d, v%d, v%d, v%d' % (d, d, S + idx, S + idx + 1))
            idx += 2
            flip ^= 1
        a('v_max_f32 v%d, v%d, v%d' % (t0, t0, t1))
        self.swap_red('v_max_f32', t0, t1)
        MC = TMP + 8
        a('v_mul_f32 v%d, s%d, v%d' % (MC, S_C, t0))
        for i in range(32):
            a('v_fma_f32 v%d, v%d, s%d, -v%d' % (S + i, S + i, S_C, MC))
        vload4(3, 0)
        for i in range(32):
            a('v_exp_f32 v%d, v%d' % (S + i, S + i))
        vload4(3, 1)
        self.stamp(4)
        for r in range(4):
            a('v_mov_b32 v%d, 0x3f803f80' % (TMP + 4 + r))
        for i in range(16):
            a('v_cvt_pk_bf16_f32 v%d, v%d, v%d' % (S + 2 * i, S + 2 * i, S + 2 * i + 1))
        for i in range(16):
            a('v_cndmask_b32 v%d, 0, v%d, s[%d:%d]' % (PLO + i, S + 2 * i, S_MASKLO, S_MASKLO + 1))
        for b in range(4):
            a('v_mfma_f32_16x16x32_bf16 %s, %s, %s, %s' % (
                vr(TMP + 12), vr(TMP + 4), vr(PLO + 4 * b), '0' if b == 0 else vr(TMP + 12)))
        for i in range(16):
            a('v_cndmask_b32 v%d, v%d, 0, s[%d:%d]' % (PHI + i, S + 2 * i, S_MASKLO, S_MASKLO + 1))
        a('s_mov_b64 exec, 0xff')
        a('ds_write2_b32 v%d, v%d, v%d offset0:%d offset1:%d' % (VLDS, MC, TMP + 12, LDS_M // 4, LDS_M // 4 + 4))
        a('s_mov_b64 exec, -1')
        a('v_lshlrev_b32 v%d, 5, v%d' % (VLDS, t2))
        self.stamp(5)

        def mid_barrier():
            a('s_waitcnt lgkmcnt(0)')
            a('s_barrier')
            a('ds_read_b128 %s, v%d offset:%d' % (vr(M4), VLDS, LDS_M))
            a('ds_read_b128 %s, v%d offset:%d' % (vr(L4), VLDS, LDS_M + 16))
            a('ds_read_b64 %s, v%d offset:%d' % (vr(G + 2, 2), VLDS, LDS_F))
            self.stamp(6)

        def factors():
            a('s_waitcnt lgkmcnt(0)')
            a('v_max3_f32 v%d, v%d, v%d, v%d' % (t0, M4, M4 + 1, M4 + 2))
            a('v_readfirstlane_b32 s%d, v%d' % (S_FAST, G + 2))
            a('v_max_f32 v%d, v%d, v%d' % (t0, t0, M4 + 3))
            for w in range(4):
                a('v_sub_f32 v%d, v%d, v%d' % (M4 + w, M4 + w, t0))
            for w in range(4):
                a('v_exp_f32 v%d, v%d' % (M4 + w, M4 + w))
            a('v_mul_f32 v%d, v%d, v%d' % (t1, L4, M4))
            for w in range(1, 4):
                a('v_fmac_f32 v%d, v%d, v%d' % (t1, L4 + w, M4 + w))
            a('v_rcp_f32 v%d, v%d' % (L4, t1))
            a('v_log_f32 v%d, v%d' % (t1, t1))
            for w in range(4):
                a('v_mul_f32 v%d, v%d, v%d' % (M4 + w, M4 + w, L4))
            a('v_add_f32 v%d, v%d, v%d' % (G + 2, t0, t1))

        for blk in range(4):
            if blk == o.mid:
                mid_barrier()
            if blk == o.mid + 1:
                factors()
            for k in range(4):
                if blk == 3 or k == 0 or k == 2:
                    kk = k if blk == 3 else k + 1
                    a.wait_vm('v%d_%d' % (blk, 2 * kk + 1))
                for e in range(8):
                    x = VB[blk] + 4 * (2 * k) + (e >> 1)
                    y = VB[blk] + 4 * (2 * k + 1) + (e >> 1)
                    a('v_perm_b32 v%d, v%d, v%d, s%d' % (TMP + 4 * e + k, y, x, S_SEL_HI if e & 1 else S_SEL_LO))
            if blk == 3:
                self.stamp(7)
            for e in range(8):
                ep = e & 3
                first = blk == 0 and e < 4
                a('v_mfma_f32_16x16x32_bf16 %s, %s, %s, %s' % (
                    vr(ACC + 4 * ep), vr(TMP + 4 * e), vr((PLO if e < 4 else PHI) + 4 * blk),
                    '0' if first else vr(ACC + 4 * ep)))
        for ep in range(4):
            a('ds_write_b128 v%d, %s offset:%d' % (VLW, vr(ACC + 4 * ep), LDS_ACC + 1056 * ep))
        a('s_waitcnt lgkmcnt(0)')
        a('s_barrier')
        R = TMP
        for w in range(4):
            a('ds_read_b128 %s, v%d offset:%d' % (vr(R + 4 * w), VLR, LDS_ACC + 4224 * w))
        a('s_cmp_lg_u32 s%d, 0' % S_FAST)
        for w in range(4):
            a('s_waitcnt lgkmcnt(%d)' % (3 - w))
            sel = 'op_sel:[0,%d,0] op_sel_hi:[1,%d,1]' % (w & 1, w & 1)
            for hf in range(2):
                if w == 0:
                    a('v_pk_mul_f32 %s, %s, %s op_sel:[0,0] op_sel_hi:[1,0]' % (
                        vr(R + 2 * hf, 2), vr(R + 2 * hf, 2), vr(M4, 2)))
                else:
                    a('v_pk_fma_f32 %s, %s, %s, %s %s' % (
                        vr(R + 2 * hf, 2), vr(R + 4 * w + 2 * hf, 2), vr(M4 + (w & 2), 2), vr(R + 2 * hf, 2), sel))
        a('v_cvt_pk_bf16_f32 v%d, v%d, v%d' % (G, R, R + 1))
        a('v_cvt_pk_bf16_f32 v%d, v%d, v%d' % (G + 1, R + 2, R + 3))
        a('s_cbranch_scc0 L_slow')
        a('buffer_store_dwordx4 %s, v%d, s[%d:%d], 0 offen' % (vr(G), VPS, SRD_W, SRD_W + 3))
        if o.prof:
            a.label('L_pdone')
            self.stamp(8)
            a('s_mov_b32 s%d, 0x%x' % (S_CNT, o.spin))
            self.dump_stamps(t0, range(9))
        a('s_endpgm')
        a.label('L_slow')
        a('buffer_store_dwordx4 %s, v%d, s[%d:%d], 0 offen sc1' % (vr(G), VPS, SRD_W, SRD_W + 3))
        if o.prof:
            a('s_branch L_pdone')
        a.label('L_end')
        a('s_endpgm')
        self.consumer()

    def consumer(self):
        o, a = self.o, self.a
        VV, t0, t1, t2 = 2, 4, 5, 6
        CO, TQ, TK, TV, COUT, XA, XL, VF = 7, 8, 9, 10, 11, 12, 13, 14
        FT = 16
        IN = 20
        U = 36
        W = 52
        A = 56
        LS, LT, WT = 60, 61, 62
        a.raw('.p2align 6')
        a.label('L_cons')
        a.flush_hazards()
        a('s_setprio 3')
        a('s_lshr_b32 s36, s%d, 2' % S_SPLIT)
        a('s_and_b32 s39, s%d, 3' % S_SPLIT)
        a('s_lshl_b32 s37, s%d, 3' % S_GROUP)
        a('s_add_u32 s37, s37, s36')
        a('s_lshl_b32 s%d, s37, 8' % S_ROW)
        a('s_mul_i32 s%d, s%d, %d' % (S_GB, S_GROUP, GSTRIDE))
        a('s_add_u32 s96, s%d, %d' % (S_GB, EPOCH_OFF))
        a('v_lshlrev_b32 v%d, 2, v0' % t2)
        a('v_add_u32 v%d, s%d, v%d' % (TQ, S_ROW, t2))
        a('s_lshl_b32 s38, s%d, 8' % S_GROUP)
        a('v_add_u32 v%d, s38, v%d' % (TK, t2))
        a('v_and_b32 v%d, 7, v0' % t1)
        a('v_lshl_add_u32 v%d, v%d, 3, v%d' % (t1, t0, t1))
        a('s_lshl_b32 s36, s39, 5')
        a('v_add_lshl_u32 v%d, v%d, s36, 1' % (t1, t1))
        a('v_add_u32 v%d, s%d, v%d' % (COUT, S_ROW, t1))
        a('v_add_u32 v%d, s38, v%d' % (TV, t1))
        a('s_waitcnt lgkmcnt(0)')
        a('s_load_dword s%d, s[20:21], s96' % S_EPOCH)
        a('s_load_dword s%d, s[14:15], 0' % S_MASKW)
        a('global_load_dword v%d, v%d, s[4:5]' % (TQ, TQ), count=False)
        a('global_load_dword v%d, v%d, s[10:11]' % (TK, TK), count=False)
        a('global_load_ushort v%d, v%d, s[12:13]' % (TV, TV), count=False)
        self.srd_w()
        a('s_getreg_b32 s%d, hwreg(HW_REG_XCC_ID, 0, 4)' % S_XCC)
        a('s_mul_i32 s36, s%d, %d' % (S_SPLIT, CSTRIDE))
        a('s_add_u32 s36, s36, s%d' % S_GB)
        a('v_add_u32 v%d, s36, v%d' % (CO, VV))
        a('s_add_u32 s37, s%d, %d' % (S_GB, XT_OFF))
        a('v_and_b32 v%d, 31, v0' % XA)
        a('v_lshl_add_u32 v%d, v%d, 2, s37' % (XA, XA))
        a('v_lshlrev_b32 v%d, 5, v0' % VF)
        a('s_lshl_b32 s38, s%d, 2' % S_SPLIT)
        a('s_add_u32 s37, s37, s38')
        a('s_waitcnt lgkmcnt(0)')
        a('s_mul_i32 s%d, s%d, 0x9e3779b1' % (S_TAG, S_EPOCH))
        a('s_add_u32 s%d, s%d, 0x7f4a7c15' % (S_TAG, S_TAG))
        a('s_add_u32 s%d, s%d, s%d' % (S_XCC, S_XCC, S_TAG))
        a('v_mov_b32 v%d, s%d' % (XL, S_XCC))
        a('s_mov_b64 exec, 1')
        a('buffer_store_dword v%d, off, s[%d:%d], s37' % (XL, SRD_W, SRD_W + 3), count=False)
        a('s_mov_b64 exec, -1')
        a('v_mov_b32 v%d, s%d' % (FT + 1, S_TAG))
        a('s_lshr_b32 s36, s%d, 2' % S_GROUP)
        a('s_lshl_b32 s36, s36, 4')
        a('s_lshr_b32 s36, s%d, s36' % S_MASKW)
        a('s_lshl_b32 s36, s36, 16')
        a('s_waitcnt vmcnt(0)')
        self.stamp(12)
        a('v_lshlrev_b32 v%d, 16, v%d' % (t0, TQ))
        a('v_lshlrev_b32 v%d, 16, v%d' % (t1, TK))
        a('v_and_b32 v%d, 0xffff0000, v%d' % (TQ, TQ))
        a('v_and_b32 v%d, 0xffff0000, v%d' % (TK, TK))
        a('v_mul_f32 v%d, v%d, v%d' % (t0, t0, t1))
        a('v_fmac_f32 v%d, v%d, v%d' % (t0, TQ, TK))
        a('v_lshlrev_b32 v%d, 16, v%d' % (TV, TV))
        for sh in (8, 4, 2, 1):
            a('v_add_f32_dpp v%d, v%d, v%d row_ror:%d row_mask:0xf bank_mask:0xf' % (t0, t0, t0, sh))
        self.swap_red('v_add_f32', t0, t1)
        a('v_mov_b32 v%d, s36' % t1)
        a('v_sub_f32 v%d, 1.0, v%d' % (t1, t1))
        a('v_mul_f32 v%d, %s, v%d' % (t1, f32(NEG_BIG), t1))
        a('v_mov_b32 v%d, %s' % (t2, f32(C_SCALE)))
        a('v_fma_f32 v%d, v%d, v%d, v%d' % (TQ, t0, t2, t1))
        a('s_mov_b32 s%d, 0x00ff00ff' % S_MASKLO)
        a('s_mov_b32 s%d, 0x00ff00ff' % (S_MASKLO + 1))
        a('s_mov_b32 s97, 1')
        if o.dry:
            a('s_branch L_ok')
        a.label('L_dry')
        a.flush_hazards()
        a('s_mov_b32 s97, 0')
        a('s_mov_b32 s%d, %d' % (S_CNT, o.xtry - 1))
        a.label('L_xt')
        a('buffer_load_dword v%d, v%d, s[%d:%d], 0 offen sc1' % (XL, XA, SRD_W, SRD_W + 3), count=False)
        a('s_waitcnt vmcnt(0)')
        a('v_cmp_ne_u32 vcc, s%d, v%d' % (S_XCC, XL))
        a('s_mov_b32 s%d, %d' % (S_FAST, o.fast))
        a('s_cbranch_vccz L_xok')
        a('s_mov_b32 s%d, 0' % S_FAST)
        a('s_sub_u32 s%d, s%d, 1' % (S_CNT, S_CNT))
        a('s_cbranch_scc0 L_xt')
        a.label('L_xok')
        self.stamp(13)
        a('v_mov_b32 v%d, s%d' % (FT, S_FAST))
        a('s_mov_b64 exec, 0xff')
        a('ds_write_b64 v%d, %s offset:%d' % (VF, vr(FT, 2), LDS_F))
        a('s_mov_b64 exec, -1')
        a('s_mov_b32 s%d, 0x%x' % (S_CNT, o.spin))
        a('s_waitcnt lgkmcnt(0)')
        a('s_barrier')

        def in_loads():
            for i in range(4):
                a('buffer_load_dwordx4 %s, v%d, s[%d:%d], 0 offen offset:%d sc1' % (
                    vr(IN + 4 * i), CO, SRD_W, SRD_W + 3, 1024 * i), count=False)

        in_loads()
        a('s_barrier')
        self.stamp(9)
        a.label('L_chk')
        a('s_waitcnt vmcnt(0)')
        a('v_xor_b32 v%d, s%d, v%d' % (t0, S_TAG, IN + 3))
        for i in range(1, 4):
            a('v_bitop3_b32 v%d, v%d, s%d, v%d bitop3:0xbe' % (t0, IN + 4 * i + 3, S_TAG, t0))
        a('v_cmp_ne_u32 vcc, 0, v%d' % t0)
        a('s_cbranch_vccz L_ok')
        a('s_mov_b64 exec, vcc')
        in_loads()
        a('s_mov_b64 exec, -1')
        a('s_sub_u32 s%d, s%d, 1' % (S_CNT, S_CNT))
        a('s_cbranch_scc0 L_chk')
        a('s_endpgm')
        a.label('L_ok')
        a.flush_hazards()
        self.stamp(10)
        unp = []
        for i in range(4):
            for hf in range(2):
                unp.append('v_lshlrev_b32 v%d, 16, v%d' % (U + 4 * i + 2 * hf, IN + 4 * i + hf))
                unp.append('v_and_b32 v%d, 0xffff0000, v%d' % (U + 4 * i + 2 * hf + 1, IN + 4 * i + hf))

        def fill(n):
            for _ in range(n):
                if unp:
                    a(unp.pop(0))
        a('v_max3_f32 v%d, v%d, v%d, v%d' % (t0, IN + 2, IN + 6, TQ))
        a('v_max3_f32 v%d, v%d, v%d, v%d' % (t0, IN + 10, IN + 14, t0))
        fill(2)
        a('v_max_f32_dpp v%d, v%d, v%d row_ror:8 row_mask:0xf bank_mask:0xf' % (t0, t0, t0))
        a('v_mov_b32 v%d, v%d' % (t1, t0))
        fill(2)
        a('v_permlane16_swap_b32 v%d, v%d' % (t0, t1))
        a('v_max_f32 v%d, v%d, v%d' % (t0, t0, t1))
        a('v_mov_b32 v%d, v%d' % (t1, t0))
        fill(2)
        a('v_permlane32_swap_b32 v%d, v%d' % (t0, t1))
        a('v_max_f32 v%d, v%d, v%d' % (t0, t0, t1))
        for i in range(4):
            a('v_sub_f32 v%d, v%d, v%d' % (W + i, IN + 4 * i + 2, t0))
        a('v_sub_f32 v%d, v%d, v%d' % (WT, TQ, t0))
        for x in (W, W + 1, W + 2, W + 3, WT):
            a('v_exp_f32 v%d, v%d' % (x, x))
            fill(2)
        fill(16)
        a('v_add_f32 v%d, v%d, v%d' % (LS, W, W + 1))
        a('v_add_f32 v%d, v%d, v%d' % (LT, W + 2, W + 3))
        for i in range(4):
            sel = 'op_sel:[0,%d,0] op_sel_hi:[1,%d,1]' % (i & 1, i & 1)
            for hf in range(2):
                if i == 0:
                    a('v_pk_mul_f32 %s, %s, %s op_sel:[0,0] op_sel_hi:[1,0]' % (
                        vr(A + 2 * hf, 2), vr(U + 2 * hf, 2), vr(W, 2)))
                else:
                    a('v_pk_fma_f32 %s, %s, %s, %s %s' % (
                        vr(A + 2 * hf, 2), vr(U + 4 * i + 2 * hf, 2), vr(W + (i & 2), 2), vr(A + 2 * hf, 2), sel))
            if i == 0:
                a('v_add_f32 v%d, v%d, v%d' % (LS, LS, LT))
            if i == 1:
                a('v_add_f32_dpp v%d, v%d, v%d row_ror:8 row_mask:0xf bank_mask:0xf' % (LS, LS, LS))
            if i == 2:
                a('v_mov_b32 v%d, v%d' % (LT, LS))
        a('v_permlane16_swap_b32 v%d, v%d' % (LS, LT))
        a('v_add_f32 v%d, v%d, v%d' % (LS, LS, LT))
        a('v_permlane32_swap_b32 v%d, v%d' % (A, A + 2))
        a('v_permlane32_swap_b32 v%d, v%d' % (A + 1, A + 3))
        a('v_mov_b32 v%d, v%d' % (LT, LS))
        a('v_pk_add_f32 %s, %s, %s' % (vr(A, 2), vr(A, 2), vr(A + 2, 2)))
        a('s_cmp_lg_u32 s97, 0')
        a('v_permlane32_swap_b32 v%d, v%d' % (LS, LT))
        a('v_permlane16_swap_b32 v%d, v%d' % (A, A + 1))
        a('v_add_f32 v%d, v%d, v%d' % (LS, LS, LT))
        a('v_add_f32 v%d, v%d, v%d' % (LS, LS, WT))
        a('v_add_f32 v%d, v%d, v%d' % (A, A, A + 1))
        a('v_rcp_f32 v%d, v%d' % (LS, LS))
        a('v_add_f32_dpp v%d, v%d, v%d row_ror:8 row_mask:0xf bank_mask:0xf' % (A, A, A))
        a('v_fmac_f32 v%d, v%d, v%d' % (A, WT, TV))
        a('v_mul_f32 v%d, v%d, v%d' % (A, A, LS))
        a('v_cvt_pk_bf16_f32 v%d, v%d, v%d' % (A, A, A))
        if o.dry:
            a('s_cbranch_scc1 L_dry')
        a('s_mov_b64 exec, s[%d:%d]' % (S_MASKLO, S_MASKLO + 1))
        a('global_store_short v%d, v%d, s[16:17]' % (COUT, A), count=False)
        a('s_cmp_lg_u32 s%d, 0' % S_SPLIT)
        a('s_cbranch_scc1 L_done')
        a('s_mov_b64 exec, 1')
        a('buffer_store_dword v%d, off, s[%d:%d], s96 sc1' % (FT + 1, SRD_W, SRD_W + 3), count=False)
        a.label('L_done')
        self.stamp(11)
        self.dump_stamps(t0, (0, 9, 10, 11, 12, 13))
        a('s_endpgm')

    def build(self):
        o = self.o
        main = NAME + '_kernel'
        head = ['; tree-attention decode: split-KV flash decoding with an in-launch tagged combine (own generator)']
        head.append('; @launch grid=(256,1,1) block=(320,1,1) lds=%d' % max(LDS_TOTAL, o.lds))
        head += ['.amdgcn_target "amdgcn-amd-amdhsa--gfx950"', '.text']
        a = self.a
        a.raw('.globl %s' % main)
        a.raw('.p2align %d' % o.align)
        a.raw('.type %s,@function' % main)
        self.main_kernel(main)
        tail = ['.section .rodata,"a"', '.p2align 6', '.amdhsa_kernel %s' % main,
                '  .amdhsa_next_free_vgpr 256',
                '  .amdhsa_next_free_sgpr 102',
                '  .amdhsa_accum_offset 256',
                '  .amdhsa_group_segment_fixed_size 0',
                '  .amdhsa_kernarg_size 72',
                '  .amdhsa_user_sgpr_count 2',
                '  .amdhsa_user_sgpr_kernarg_segment_ptr 1',
                '  .amdhsa_system_sgpr_workgroup_id_x 1',
                '.end_amdhsa_kernel']
        return '\n'.join(head) + '\n' + a.text() + '\n'.join(tail) + '\n'


def main():
    p = argparse.ArgumentParser()
    p.add_argument('--prof', type=int, default=0)
    p.add_argument('--lds', type=int, default=0)
    p.add_argument('--align', type=int, default=12)
    p.add_argument('--fast', type=int, default=1)
    p.add_argument('--mid', type=int, default=0)
    p.add_argument('--dry', type=int, default=0)
    p.add_argument('--xtry', type=int, default=4)
    p.add_argument('--spin', type=int, default=200000)
    p.add_argument('--kf', default='')
    p.add_argument('--vf', default='')
    p.add_argument('-o', default='var/f4.s')
    args = p.parse_args()
    g = Gen(args)
    txt = g.build()
    open(args.o, 'w').write(txt)
    print('wrote', args.o, 'max outstanding', g.a.maxout, 'lines', txt.count('\n'), file=sys.stderr)


if __name__ == '__main__':
    main()
```

```python
import argparse
import math
import struct
import sys

from asmlib import Asm

NAME = 'standalone__tree_speculative_verify_tree_attention_over_candidate_token_tree__decode'


def f32(x):
    return '0x%08x' % struct.unpack('<I', struct.pack('<f', x))[0]


C_SCALE = (128.0 ** -0.5) * math.log2(math.e)
NEG_BIG = -1.0e9 * math.log2(math.e)

CSTRIDE = 4224
GSTRIDE = 32 * CSTRIDE
XT_OFF = 4096
EPOCH_OFF = CSTRIDE + 4096
XS_OFF = 2 * CSTRIDE + 4096
PROF_OFF = 3 << 20
WS_RECORDS = 8 * GSTRIDE

LDS_M = 0
LDS_F = 256
LDS_ACC = 512
LDS_TOTAL = 512 + 4 * 4224

S_GROUP, S_SPLIT = 22, 23
SRD_K, SRD_V, SRD_W = 24, 28, 32
S_OFF = 40
S_SEL_LO, S_SEL_HI = 48, 49
S_C = 50
S_TAG = 51
S_MASKLO = 52
S_MASKW = 54
S_GB = 55
S_CNT = 57
S_EPOCH = 59
S_ROW = 61
S_TS = 64
S_XCC = 99
S_FAST = 100


def soff(t):
    return '0' if t == 0 else 's%d' % (S_OFF + t)


def vr(base, n=4):
    return 'v[%d:%d]' % (base, base + n - 1)


class Gen:
    def __init__(self, args):
        self.o = args
        self.a = Asm()

    def stamp(self, col):
        if self.o.prof:
            self.a('s_memrealtime s[%d:%d]' % (S_TS + 2 * col, S_TS + 2 * col + 1))

    def dump_stamps(self, vt, cols):
        if not self.o.prof:
            return
        a = self.a
        a('s_waitcnt lgkmcnt(0)')
        a('s_mul_i32 s36, s2, 5')
        a('s_add_u32 s36, s36, s3')
        a('s_lshl_b32 s36, s36, 6')
        a('s_add_u32 s36, s36, 0x%x' % PROF_OFF)
        a('s_mov_b64 exec, 1')
        a('v_mov_b32 v%d, s36' % vt)
        for i, r in [(i, S_TS + 2 * i) for i in cols] + [(14, S_FAST), (15, S_CNT)]:
            a('v_mov_b32 v%d, s%d' % (vt + 1, r))
            a('buffer_store_dword v%d, v%d, s[%d:%d], 0 offen offset:%d' % (vt + 1, vt, SRD_W, SRD_W + 3, 4 * i),
              count=False)
            a('s_waitcnt vmcnt(0)')

    def swap_red(self, op, x, t):
        a = self.a
        a('v_mov_b32 v%d, v%d' % (t, x))
        a('v_permlane16_swap_b32 v%d, v%d' % (x, t))
        a('%s v%d, v%d, v%d' % (op, x, x, t))
        a('v_mov_b32 v%d, v%d' % (t, x))
        a('v_permlane32_swap_b32 v%d, v%d' % (x, t))
        a('%s v%d, v%d, v%d' % (op, x, x, t))

    def srd_w(self):
        a = self.a
        a('s_mov_b32 s%d, s20' % SRD_W)
        a('s_mov_b32 s%d, s21' % (SRD_W + 1))
        a('s_mov_b32 s%d, 0x%x' % (SRD_W + 2, (4 << 20) if self.o.prof else WS_RECORDS))
        a('s_mov_b32 s%d, 0x00020000' % (SRD_W + 3))

    def main_kernel(self, label):
        o, a = self.o, self.a
        VK, VV, VQ = 1, 2, 3
        t0, t1, t2 = 4, 5, 6
        VPS = 7
        VLDS, VLW, VLR = 61, 62, 63
        Q = ACC = 8
        S = 24
        VB = [64, 96, 128, 160]
        K = 128
        PLO, PHI, TMP = 192, 208, 224
        M4, L4 = 24, 28
        G = 40

        a.label(label)
        self.stamp(0)
        a('s_load_dwordx16 s[4:19], s[0:1], 0')
        a('s_load_dwordx2 s[20:21], s[0:1], 64')
        a('s_cmp_ge_u32 s2, 256')
        a('s_cbranch_scc1 L_end')
        a('v_lshrrev_b32 v1, 6, v0')
        a('v_and_b32 v0, 63, v0')
        a('v_readfirstlane_b32 s3, v1')
        a('s_and_b32 s%d, s2, 7' % S_GROUP)
        a('s_lshr_b32 s%d, s2, 3' % S_SPLIT)
        a('s_lshl_b32 s36, s%d, 22' % S_GROUP)
        a('s_lshl_b32 s37, s%d, 17' % S_SPLIT)
        a('s_add_u32 s36, s36, s37')
        a('v_lshrrev_b32 v%d, 4, v0' % t0)
        a('v_lshlrev_b32 v%d, 4, v0' % VV)
        a('s_cmp_eq_u32 s3, 4')
        a('s_cbranch_scc1 L_cons')
        a('s_lshl_b32 s37, s3, 15')
        a('s_add_u32 s36, s36, s37')
        if o.kfl:
            a('v_and_b32 v%d, 8, v0' % t1)
            a('v_lshlrev_b32 v%d, 4, v%d' % (t0, t0))
            a('v_lshl_add_u32 v%d, v%d, 3, v%d' % (t0, t1, t0))
            a('v_and_b32 v%d, 3, v0' % t1)
            a('v_bfe_u32 v%d, v0, 2, 1' % t2)
            a('v_lshl_add_u32 v%d, v%d, 2, v%d' % (t1, t1, t2))
            a('v_lshl_add_u32 v%d, v%d, 8, v%d' % (VK, t1, t0))
            a('v_and_b32 v%d, 7, v0' % t1)
            a('v_lshl_add_u32 v%d, v%d, 8, v%d' % (VQ, t1, t0))
        else:
            a('v_and_b32 v%d, 3, v0' % t1)
            a('v_bfe_u32 v%d, v0, 2, 2' % t2)
            a('v_lshl_add_u32 v%d, v%d, 2, v%d' % (t1, t1, t2))
            a('v_lshlrev_b32 v%d, 8, v%d' % (VK, t1))
            a('v_lshl_add_u32 v%d, v%d, 4, v%d' % (VK, t0, VK))
            a('v_and_b32 v%d, 7, v0' % t1)
            a('v_lshlrev_b32 v%d, 8, v%d' % (VQ, t1))
            a('v_lshl_add_u32 v%d, v%d, 4, v%d' % (VQ, t0, VQ))
        a('s_lshl_b32 s37, s%d, 11' % S_GROUP)
        a('v_add_u32 v%d, s37, v%d' % (VQ, VQ))
        for t in range(1, 8):
            a('s_movk_i32 s%d, 0x%x' % (S_OFF + t, t * 4096))
        for srd in (SRD_K, SRD_V):
            a('s_mov_b32 s%d, 0x8000' % (srd + 2))
            a('s_mov_b32 s%d, 0x00020000' % (srd + 3))
        a('s_waitcnt lgkmcnt(0)')
        a('s_add_u32 s%d, s6, s36' % SRD_K)
        a('s_addc_u32 s%d, s7, 0' % (SRD_K + 1))
        self.stamp(1)

        def kload(t):
            for j in range(4):
                a('buffer_load_dwordx4 %s, v%d, s[%d:%d], %s offen offset:%d%s' % (
                    vr(K + 16 * t + 4 * j), VK, SRD_K, SRD_K + 3, soff(t),
                    512 * (j >> 1) + 128 * (j & 1) if o.kfl else 64 * j, o.kf), tag='k%d_%d' % (t, j))

        def vload4(blk, half):
            for i in range(4 * half, 4 * half + 4):
                a('buffer_load_dwordx4 %s, v%d, s[%d:%d], %s offen offset:%d%s' % (
                    vr(VB[blk] + 4 * i), VV, SRD_V, SRD_V + 3, soff(2 * blk + (i >> 2)), 1024 * (i & 3), o.vf),
                  tag='v%d_%d' % (blk, i))

        def kmfma(t):
            a.wait_vm('q3' if t == 0 else 'k%d_3' % t)
            for j in range(4):
                a('v_mfma_f32_16x16x32_bf16 %s, %s, %s, %s' % (
                    vr(S + 4 * t), vr(K + 16 * t + 4 * j), vr(Q + 4 * j), '0' if j == 0 else vr(S + 4 * t)))

        def f0():
            a('s_add_u32 s%d, s8, s36' % SRD_V)
            a('s_addc_u32 s%d, s9, 0' % (SRD_V + 1))
            a('s_lshl_b32 s36, s3, 2')
            a('v_lshl_add_u32 v%d, v0, 5, s36' % VLDS)

        def f1():
            self.srd_w()
            a('s_mul_i32 s36, s3, 4224')
            a('v_add_u32 v%d, s36, v%d' % (VLW, VV))

        def f2():
            a('v_and_b32 v%d, 3, v0' % t0)
            a('v_mul_u32_u24 v%d, 1056, v%d' % (VLR, t0))

        def f3():
            a('v_bfe_u32 v%d, v0, 2, 1' % t0)
            a('v_lshl_add_u32 v%d, v%d, 7, v%d' % (VLR, t0, VLR))

        def f4():
            a('v_lshrrev_b32 v%d, 3, v0' % t2)
            a('v_lshl_add_u32 v%d, v%d, 4, v%d' % (VLR, t2, VLR))

        def f5():
            a('s_lshl_b32 s37, s3, 8')
            a('v_add_u32 v%d, s37, v%d' % (VLR, VLR))

        def f6():
            a('s_mov_b32 s%d, 0x05040100' % S_SEL_LO)
            a('s_mov_b32 s%d, 0x07060302' % S_SEL_HI)
            a('s_mov_b32 s%d, 0x00ff00ff' % S_MASKLO)
            a('s_mov_b32 s%d, 0x00ff00ff' % (S_MASKLO + 1))
            a('v_mul_u32_u24 v%d, %d, v%d' % (VPS, 4 * CSTRIDE, t2))

        def f7():
            a('s_mov_b32 s%d, %s' % (S_C, f32(C_SCALE)))
            a('s_mul_i32 s37, s%d, %d' % (S_GROUP, GSTRIDE))
            a('s_add_u32 s36, s36, s37')
            a('s_lshl_b32 s37, s%d, 7' % S_SPLIT)
            a('s_add_u32 s36, s36, s37')
            a('v_lshl_add_u32 v%d, v%d, 4, v%d' % (VPS, t1, VPS))

        def f8():
            a('v_add_u32 v%d, s36, v%d' % (VPS, VPS))

        MC = TMP + 8
        if o.kfl:
            self.k_phase_lines(kload, vload4, [f0, f1, f2, f3, f4, f5, f6, f7, f8], VQ, Q, K, S, PLO, PHI, TMP, MC)
        else:
            kload(0)
            f0()
            for j in range(4):
                a('global_load_dwordx4 %s, v%d, s[4:5] offset:%d' % (vr(Q + 4 * j), VQ, 64 * j), tag='q%d' % j)
            fl = [f1, f2, f3, f4, f5, f6, f7]
            for t in range(1, 8):
                fl[t - 1]()
                kload(t)
            f8()
            vload4(0, 0)
            self.stamp(2)
            kmfma(0)
            kmfma(1)
            vload4(0, 1)
            kmfma(2)
            kmfma(3)
            vload4(1, 0)
            kmfma(4)
            vload4(1, 1)
            kmfma(5)
            a('v_max3_f32 v%d, v%d, v%d, v%d' % (t0, S, S + 1, S + 2))
            a('v_max3_f32 v%d, v%d, v%d, v%d' % (t1, S + 3, S + 4, S + 5))
            idx, flip = 6, 0
            while idx < 20:
                d = (t0, t1)[flip]
                a('v_max3_f32 v%d, v%d, v%d, v%d' % (d, d, S + idx, S + idx + 1))
                idx += 2
                flip ^= 1
            vload4(2, 0)
            kmfma(6)
            kmfma(7)
            self.stamp(3)
            vload4(2, 1)
            while idx < 32:
                d = (t0, t1)[flip]
                a('v_max3_f32 v%d, v%d, v%d, v%d' % (d, d, S + idx, S + idx + 1))
                idx += 2
                flip ^= 1
            a('v_max_f32 v%d, v%d, v%d' % (t0, t0, t1))
            self.swap_red('v_max_f32', t0, t1)
            MC = TMP + 8
            a('v_mul_f32 v%d, s%d, v%d' % (MC, S_C, t0))
            for i in range(32):
                a('v_fma_f32 v%d, v%d, s%d, -v%d' % (S + i, S + i, S_C, MC))
            vload4(3, 0)
            for i in range(32):
                a('v_exp_f32 v%d, v%d' % (S + i, S + i))
            vload4(3, 1)
            self.stamp(4)
            for r in range(4):
                a('v_mov_b32 v%d, 0x3f803f80' % (TMP + 4 + r))
            for i in range(16):
                a('v_cvt_pk_bf16_f32 v%d, v%d, v%d' % (S + 2 * i, S + 2 * i, S + 2 * i + 1))
            for i in range(16):
                a('v_cndmask_b32 v%d, 0, v%d, s[%d:%d]' % (PLO + i, S + 2 * i, S_MASKLO, S_MASKLO + 1))
            for b in range(4):
                a('v_mfma_f32_16x16x32_bf16 %s, %s, %s, %s' % (
                    vr(TMP + 12), vr(TMP + 4), vr(PLO + 4 * b), '0' if b == 0 else vr(TMP + 12)))
            for i in range(16):
                a('v_cndmask_b32 v%d, v%d, 0, s[%d:%d]' % (PHI + i, S + 2 * i, S_MASKLO, S_MASKLO + 1))
        a('s_mov_b64 exec, 0xff')
        a('ds_write2_b32 v%d, v%d, v%d offset0:%d offset1:%d' % (VLDS, MC, TMP + 12, LDS_M // 4, LDS_M // 4 + 4))
        a('s_mov_b64 exec, -1')
        a('v_lshlrev_b32 v%d, 5, v%d' % (VLDS, t2))
        self.stamp(5)

        def mid_barrier():
            a('s_waitcnt lgkmcnt(0)')
            a('s_barrier')
            a('ds_read_b128 %s, v%d offset:%d' % (vr(M4), VLDS, LDS_M))
            a('ds_read_b128 %s, v%d offset:%d' % (vr(L4), VLDS, LDS_M + 16))
            a('ds_read_b64 %s, v%d offset:%d' % (vr(G + 2, 2), VLDS, LDS_F))
            self.stamp(6)

        def factors():
            a('s_waitcnt lgkmcnt(0)')
            a('v_max3_f32 v%d, v%d, v%d, v%d' % (t0, M4, M4 + 1, M4 + 2))
            a('v_readfirstlane_b32 s%d, v%d' % (S_FAST, G + 2))
            a('v_max_f32 v%d, v%d, v%d' % (t0, t0, M4 + 3))
            for w in range(4):
                a('v_sub_f32 v%d, v%d, v%d' % (M4 + w, M4 + w, t0))
            for w in range(4):
                a('v_exp_f32 v%d, v%d' % (M4 + w, M4 + w))
            a('v_mul_f32 v%d, v%d, v%d' % (t1, L4, M4))
            for w in range(1, 4):
                a('v_fmac_f32 v%d, v%d, v%d' % (t1, L4 + w, M4 + w))
            a('v_rcp_f32 v%d, v%d' % (L4, t1))
            a('v_log_f32 v%d, v%d' % (t1, t1))
            for w in range(4):
                a('v_mul_f32 v%d, v%d, v%d' % (M4 + w, M4 + w, L4))
            a('v_add_f32 v%d, v%d, v%d' % (G + 2, t0, t1))

        for blk in range(4):
            if blk == o.mid:
                mid_barrier()
            if blk == o.mid + 1:
                factors()
            for k in range(4):
                if blk == 3 or k == 0 or k == 2:
                    kk = k if blk == 3 else k + 1
                    a.wait_vm('v%d_%d' % (blk, 2 * kk + 1))
                for e in range(8):
                    x = VB[blk] + 4 * (2 * k) + (e >> 1)
                    y = VB[blk] + 4 * (2 * k + 1) + (e >> 1)
                    a('v_perm_b32 v%d, v%d, v%d, s%d' % (TMP + 4 * e + k, y, x, S_SEL_HI if e & 1 else S_SEL_LO))
            if blk == 3:
                self.stamp(7)
            for e in range(8):
                ep = e & 3
                first = blk == 0 and e < 4
                a('v_mfma_f32_16x16x32_bf16 %s, %s, %s, %s' % (
                    vr(ACC + 4 * ep), vr(TMP + 4 * e), vr((PLO if e < 4 else PHI) + 4 * blk),
                    '0' if first else vr(ACC + 4 * ep)))
        for ep in range(4):
            a('ds_write_b128 v%d, %s offset:%d' % (VLW, vr(ACC + 4 * ep), LDS_ACC + 1056 * ep))
        a('s_waitcnt lgkmcnt(0)')
        a('s_barrier')
        R = TMP
        for w in range(4):
            a('ds_read_b128 %s, v%d offset:%d' % (vr(R + 4 * w), VLR, LDS_ACC + 4224 * w))
        a('s_cmp_lg_u32 s%d, 0' % S_FAST)
        for w in range(4):
            a('s_waitcnt lgkmcnt(%d)' % (3 - w))
            sel = 'op_sel:[0,%d,0] op_sel_hi:[1,%d,1]' % (w & 1, w & 1)
            for hf in range(2):
                if w == 0:
                    a('v_pk_mul_f32 %s, %s, %s op_sel:[0,0] op_sel_hi:[1,0]' % (
                        vr(R + 2 * hf, 2), vr(R + 2 * hf, 2), vr(M4, 2)))
                else:
                    a('v_pk_fma_f32 %s, %s, %s, %s %s' % (
                        vr(R + 2 * hf, 2), vr(R + 4 * w + 2 * hf, 2), vr(M4 + (w & 2), 2), vr(R + 2 * hf, 2), sel))
        a('v_cvt_pk_bf16_f32 v%d, v%d, v%d' % (G, R, R + 1))
        a('v_cvt_pk_bf16_f32 v%d, v%d, v%d' % (G + 1, R + 2, R + 3))
        a('s_cbranch_scc0 L_slow')
        a('buffer_store_dwordx4 %s, v%d, s[%d:%d], 0 offen' % (vr(G), VPS, SRD_W, SRD_W + 3))
        if o.prof:
            a.label('L_pdone')
            self.stamp(8)
            a('s_mov_b32 s%d, 0x%x' % (S_CNT, o.spin))
            self.dump_stamps(t0, range(9))
        a('s_endpgm')
        a.label('L_slow')
        a('buffer_store_dwordx4 %s, v%d, s[%d:%d], 0 offen sc1' % (vr(G), VPS, SRD_W, SRD_W + 3))
        if o.prof:
            a('s_branch L_pdone')
        a.label('L_end')
        a('s_endpgm')
        self.consumer()

    def k_phase_lines(self, kload, vload4, fl, VQ, Q, K, S, PLO, PHI, TMP, MC):
        a = self.a
        t0, t1 = 4, 5
        VLO, VHI = 56, 57
        T = [(40, 44, 48), (16, 20, 52)]

        def acc(t):
            tt = T[(t >> 1) & 1]
            return (S + 2 * t, tt[0]) if t % 2 == 0 else (tt[1], tt[2])

        def kmfma(t):
            a.wait_vm('q1' if t == 0 else 'k%d_3' % t)
            for hf in range(2):
                for st in range(2):
                    d = acc(t)[st]
                    a('v_mfma_f32_16x16x32_bf16 %s, %s, %s, %s' % (
                        vr(d), vr(K + 16 * t + 8 * st + 4 * hf), vr(Q + 4 * hf), vr(d) if hf else '0'))

        def comb(t):
            x, y = acc(t)
            d = S + 4 * (t >> 1)
            for i in range(4):
                a('v_permlane32_swap_b32 v%d, v%d' % (x + i, y + i))
            for i in range(4):
                if t % 2 == 0:
                    a('v_add_f32_dpp v%d, v%d, v%d row_ror:8 row_mask:0xf bank_mask:0x3' % (d + i, y + i, x + i))
                else:
                    a('v_add_f32_dpp v%d, v%d, v%d row_ror:8 row_mask:0xf bank_mask:0xc' % (d + i, x + i, y + i))

        kload(0)
        fl[0]()
        for j in range(2):
            a('global_load_dwordx4 %s, v%d, s[4:5] offset:%d' % (vr(Q + 4 * j), VQ, 128 * j), tag='q%d' % j)
        for t in range(1, 8):
            fl[t]()
            kload(t)
        fl[8]()
        vload4(0, 0)
        self.stamp(2)
        a('v_cndmask_b32 v%d, 0, -1, s[%d:%d]' % (VLO, S_MASKLO, S_MASKLO + 1))
        a('v_cndmask_b32 v%d, -1, 0, s[%d:%d]' % (VHI, S_MASKLO, S_MASKLO + 1))
        kmfma(0)
        kmfma(1)
        comb(0)
        vload4(0, 1)
        kmfma(2)
        comb(1)
        kmfma(3)
        comb(2)
        vload4(1, 0)
        kmfma(4)
        comb(3)
        vload4(1, 1)
        kmfma(5)
        comb(4)
        a('v_max3_f32 v%d, v%d, v%d, v%d' % (t0, S, S + 1, S + 2))
        a('v_max3_f32 v%d, v%d, v%d, v%d' % (t1, S + 3, S + 4, S + 5))
        a('v_max3_f32 v%d, v%d, v%d, v%d' % (t0, t0, S + 6, S + 7))
        vload4(2, 0)
        kmfma(6)
        comb(5)
        a('v_max3_f32 v%d, v%d, v%d, v%d' % (t1, t1, S + 8, S + 9))
        a('v_max3_f32 v%d, v%d, v%d, v%d' % (t0, t0, S + 10, S + 11))
        kmfma(7)
        comb(6)
        self.stamp(3)
        vload4(2, 1)
        comb(7)
        a('v_max3_f32 v%d, v%d, v%d, v%d' % (t1, t1, S + 12, S + 13))
        a('v_max3_f32 v%d, v%d, v%d, v%d' % (t0, t0, S + 14, S + 15))
        a('v_max_f32 v%d, v%d, v%d' % (t0, t0, t1))
        for r in range(2):
            a('v_mov_b32 v%d, 0x3f803f80' % (TMP + 4 + r))
        a('v_max_f32_dpp v%d, v%d, v%d row_ror:8 row_mask:0xf bank_mask:0xf' % (t0, t0, t0))
        self.swap_red('v_max_f32', t0, t1)
        a('v_mul_f32 v%d, s%d, v%d' % (MC, S_C, t0))
        for i in range(16):
            a('v_fma_f32 v%d, v%d, s%d, -v%d' % (S + i, S + i, S_C, MC))
        vload4(3, 0)
        for i in range(16):
            a('v_exp_f32 v%d, v%d' % (S + i, S + i))
        vload4(3, 1)
        self.stamp(4)
        for r in range(2, 4):
            a('v_mov_b32 v%d, 0x3f803f80' % (TMP + 4 + r))
        for i in range(8):
            a('v_cvt_pk_bf16_f32 v%d, v%d, v%d' % (S + 2 * i, S + 2 * i, S + 2 * i + 1))
        rot = ' row_ror:8 row_mask:0xf bank_mask:0xf'
        for i in range(8):
            a('v_and_b32 v%d, v%d, v%d' % (PLO + 4 * (i >> 1) + (i & 1), S + 2 * i, VLO))
        for i in range(8):
            a('v_and_b32_dpp v%d, v%d, v%d%s' % (PLO + 4 * (i >> 1) + 2 + (i & 1), S + 2 * i, VLO, rot))
        for b in range(4):
            a('v_mfma_f32_16x16x32_bf16 %s, %s, %s, %s' % (
                vr(TMP + 12), vr(TMP + 4), vr(PLO + 4 * b), '0' if b == 0 else vr(TMP + 12)))
        for i in range(8):
            a('v_and_b32_dpp v%d, v%d, v%d%s' % (PHI + 4 * (i >> 1) + (i & 1), S + 2 * i, VHI, rot))
        for i in range(8):
            a('v_and_b32 v%d, v%d, v%d' % (PHI + 4 * (i >> 1) + 2 + (i & 1), S + 2 * i, VHI))

    def consumer(self):
        o, a = self.o, self.a
        VV, t0, t1, t2 = 2, 4, 5, 6
        CO, TQ, TK, TV, COUT, XA, XL, VF = 7, 8, 9, 10, 11, 12, 13, 14
        FT = 16
        IN = 20
        U = 36
        W = 52
        A = 56
        LS, LT, WT = 60, 61, 62
        a.raw('.p2align 6')
        a.label('L_cons')
        a.flush_hazards()
        a('s_setprio 3')
        a('s_lshr_b32 s36, s%d, 2' % S_SPLIT)
        a('s_and_b32 s39, s%d, 3' % S_SPLIT)
        a('s_lshl_b32 s37, s%d, 3' % S_GROUP)
        a('s_add_u32 s37, s37, s36')
        a('s_lshl_b32 s%d, s37, 8' % S_ROW)
        a('s_mul_i32 s%d, s%d, %d' % (S_GB, S_GROUP, GSTRIDE))
        a('s_add_u32 s96, s%d, %d' % (S_GB, EPOCH_OFF))
        a('v_lshlrev_b32 v%d, 2, v0' % t2)
        a('v_add_u32 v%d, s%d, v%d' % (TQ, S_ROW, t2))
        a('s_lshl_b32 s38, s%d, 8' % S_GROUP)
        a('v_add_u32 v%d, s38, v%d' % (TK, t2))
        a('v_and_b32 v%d, 7, v0' % t1)
        a('v_lshl_add_u32 v%d, v%d, 3, v%d' % (t1, t0, t1))
        a('s_lshl_b32 s36, s39, 5')
        a('v_add_lshl_u32 v%d, v%d, s36, 1' % (t1, t1))
        a('v_add_u32 v%d, s%d, v%d' % (COUT, S_ROW, t1))
        a('v_add_u32 v%d, s38, v%d' % (TV, t1))
        if o.xd:
            a('s_getreg_b32 s%d, hwreg(HW_REG_XCC_ID, 0, 4)' % S_XCC)
            a('s_mul_i32 s36, s%d, %d' % (S_SPLIT, CSTRIDE))
            a('s_add_u32 s36, s36, s%d' % S_GB)
            a('v_add_u32 v%d, s36, v%d' % (CO, VV))
            a('v_lshl_add_u32 v%d, v0, 6, s36' % XA)
            a('s_or_b32 s%d, s%d, 0x40' % (S_XCC, S_XCC))
            a('v_mov_b32 v%d, s%d' % (XL, S_XCC))
            a('s_lshl_b32 s98, s%d, 5' % S_GROUP)
            a('s_add_u32 s37, s98, s%d' % S_SPLIT)
            a('v_mov_b32 v%d, s37' % VF)
            a('s_waitcnt lgkmcnt(0)')
            def xst():
                a('s_mov_b64 exec, 1')
                a('global_store_byte v%d, v%d, s[18:19]' % (VF, XL), count=False)
                a('s_mov_b64 exec, -1')
            if not o.xd & 4:
                xst()
            a('s_load_dword s%d, s[20:21], s96' % S_EPOCH)
            a('s_load_dword s%d, s[14:15], 0' % S_MASKW)
            a('global_load_dword v%d, v%d, s[4:5]' % (TQ, TQ), count=False)
            a('global_load_dword v%d, v%d, s[10:11]' % (TK, TK), count=False)
            a('global_load_ushort v%d, v%d, s[12:13]' % (TV, TV), count=False)
            self.srd_w()
            if o.warm == 1:
                a('buffer_load_dword v%d, v%d, s[%d:%d], 0 offen sc1' % (XA, XA, SRD_W, SRD_W + 3), count=False)
            a('s_mul_i32 s%d, s%d, 0x01010101' % (S_XCC, S_XCC))
            a('s_mov_b32 s48, s%d' % S_XCC)
            a('s_mov_b32 s49, s%d' % S_XCC)
            a('s_waitcnt lgkmcnt(0)')
            a('s_mul_i32 s%d, s%d, 0x9e3779b1' % (S_TAG, S_EPOCH))
            a('s_add_u32 s%d, s%d, 0x7f4a7c15' % (S_TAG, S_TAG))
            if o.xd & 4:
                xst()
        else:
            if o.xw:
                a('s_add_u32 s40, s%d, %d' % (S_GB, XT_OFF))
                a('s_add_u32 s41, s%d, %d' % (S_GB, XT_OFF + 64))
            a('s_waitcnt lgkmcnt(0)')
            if o.xw:
                a('s_load_dword s42, s[20:21], s40')
                a('s_load_dword s43, s[20:21], s41')
            a('s_load_dword s%d, s[20:21], s96' % S_EPOCH)
            a('s_load_dword s%d, s[14:15], 0' % S_MASKW)
            a('global_load_dword v%d, v%d, s[4:5]' % (TQ, TQ), count=False)
            a('global_load_dword v%d, v%d, s[10:11]' % (TK, TK), count=False)
            a('global_load_ushort v%d, v%d, s[12:13]' % (TV, TV), count=False)
            self.srd_w()
            if o.warm:
                a('s_mul_i32 s36, s%d, %d' % (S_SPLIT, CSTRIDE))
                a('s_add_u32 s36, s36, s%d' % S_GB)
                if o.xs:
                    a('v_lshl_add_u32 v15, v0, 7, s36')
                    a('v_and_b32 v%d, 7, v0' % XA)
                    a('s_add_u32 s98, s%d, %d' % (S_GB, XS_OFF))
                    a('v_mov_b32 v%d, %d' % (XL, CSTRIDE))
                    a('v_mad_u32_u24 v%d, v%d, v%d, s98' % (XA, XA, XL))
                    a('v_cmp_gt_u32 vcc, 32, v0')
                    a('v_cndmask_b32 v15, v%d, v15, vcc' % XA)
                else:
                    a('v_lshl_add_u32 v15, v0, 6, s36')
            if o.warm == 1:
                a('buffer_load_dword v15, v15, s[%d:%d], 0 offen sc1' % (SRD_W, SRD_W + 3), count=False)
            a('s_getreg_b32 s%d, hwreg(HW_REG_XCC_ID, 0, 4)' % S_XCC)
            a('s_mul_i32 s36, s%d, %d' % (S_SPLIT, CSTRIDE))
            a('s_add_u32 s36, s36, s%d' % S_GB)
            a('v_add_u32 v%d, s36, v%d' % (CO, VV))
            a('s_add_u32 s37, s%d, %d' % (S_GB, XT_OFF))
            if not o.xs:
                a('v_and_b32 v%d, 31, v0' % XA)
                a('v_lshl_add_u32 v%d, v%d, 2, s37' % (XA, XA))
            a('v_lshlrev_b32 v%d, 5, v0' % VF)
            a('s_lshl_b32 s38, s%d, 2' % S_SPLIT)
            a('s_add_u32 s37, s37, s38')
            a('s_waitcnt lgkmcnt(0)')
            a('s_mul_i32 s%d, s%d, 0x9e3779b1' % (S_TAG, S_EPOCH))
            a('s_add_u32 s%d, s%d, 0x7f4a7c15' % (S_TAG, S_TAG))
            a('s_add_u32 s%d, s%d, s%d' % (S_XCC, S_XCC, S_TAG))
            a('v_mov_b32 v%d, s%d' % (XL, S_XCC))
            if o.xs:
                a('s_mov_b32 s48, s%d' % S_XCC)
                a('s_mov_b32 s49, s%d' % S_XCC)
                a('s_mov_b64 exec, 0xff')
                a('buffer_store_dword v%d, v%d, s[%d:%d], s38 offen' % (XL, XA, SRD_W, SRD_W + 3), count=False)
            else:
                a('s_mov_b64 exec, 1')
                a('buffer_store_dword v%d, off, s[%d:%d], s37' % (XL, SRD_W, SRD_W + 3), count=False)
            a('s_mov_b64 exec, -1')
        a('v_mov_b32 v%d, s%d' % (FT + 1, S_TAG))
        a('s_lshr_b32 s36, s%d, 2' % S_GROUP)
        a('s_lshl_b32 s36, s36, 4')
        a('s_lshr_b32 s36, s%d, s36' % S_MASKW)
        a('s_lshl_b32 s36, s36, 16')
        a('s_waitcnt vmcnt(0)')
        self.stamp(12)
        a('v_lshlrev_b32 v%d, 16, v%d' % (t0, TQ))
        a('v_lshlrev_b32 v%d, 16, v%d' % (t1, TK))
        a('v_and_b32 v%d, 0xffff0000, v%d' % (TQ, TQ))
        a('v_and_b32 v%d, 0xffff0000, v%d' % (TK, TK))
        a('v_mul_f32 v%d, v%d, v%d' % (t0, t0, t1))
        a('v_fmac_f32 v%d, v%d, v%d' % (t0, TQ, TK))
        a('v_lshlrev_b32 v%d, 16, v%d' % (TV, TV))
        for sh in (8, 4, 2, 1):
            a('v_add_f32_dpp v%d, v%d, v%d row_ror:%d row_mask:0xf bank_mask:0xf' % (t0, t0, t0, sh))
        self.swap_red('v_add_f32', t0, t1)
        a('v_mov_b32 v%d, s36' % t1)
        a('v_sub_f32 v%d, 1.0, v%d' % (t1, t1))
        a('v_mul_f32 v%d, %s, v%d' % (t1, f32(NEG_BIG), t1))
        a('v_mov_b32 v%d, %s' % (t2, f32(C_SCALE)))
        a('v_fma_f32 v%d, v%d, v%d, v%d' % (TQ, t0, t2, t1))
        a('s_mov_b32 s%d, 0x00ff00ff' % S_MASKLO)
        a('s_mov_b32 s%d, 0x00ff00ff' % (S_MASKLO + 1))
        a('s_mov_b32 s97, 1')
        if o.dry:
            a('s_branch L_ok')
        a.label('L_dry')
        a.flush_hazards()
        a('s_mov_b32 s97, 0')
        a('s_mov_b32 s%d, %d' % (S_CNT, o.xtry - 1))
        a.label('L_xt')
        if o.xs:
            bs = (4, 24, 40, 68)
            for i, b in enumerate(bs):
                a('s_load_dwordx8 s[%d:%d], s[20:21], s98' % (b, b + 7))
                a('s_add_u32 s98, s98, %d' % (32 if i < 3 else CSTRIDE - 96))
            a('s_mov_b32 s%d, %d' % (S_FAST, o.fast))
            a('s_waitcnt lgkmcnt(0)')
            prs = [b + 2 * i for b in bs for i in range(4)]
            for r in prs:
                a('s_xor_b64 s[%d:%d], s[%d:%d], s[48:49]' % (r, r + 1, r, r + 1))
            for r in prs[1:]:
                a('s_or_b64 s[4:5], s[4:5], s[%d:%d]' % (r, r + 1))
            a('s_cbranch_scc0 L_xok')
        elif o.xd:
            a('v_lshlrev_b32 v%d, 5, v0' % VF)
            a('s_load_dwordx8 s[40:47], s[18:19], s98%s' % ('' if o.xd & 2 else ' glc'))
            a('s_mov_b32 s%d, %d' % (S_FAST, o.fast))
            a('s_waitcnt lgkmcnt(0)')
            for i in range(4):
                a('s_xor_b64 s[%d:%d], s[%d:%d], s[48:49]' % (40 + 2 * i, 41 + 2 * i, 40 + 2 * i, 41 + 2 * i))
            a('s_or_b64 s[40:41], s[40:41], s[42:43]')
            a('s_or_b64 s[44:45], s[44:45], s[46:47]')
            a('s_or_b64 s[40:41], s[40:41], s[44:45]')
            a('s_cbranch_scc0 L_xok')
        else:
            a('buffer_load_dword v%d, v%d, s[%d:%d], 0 offen sc1' % (XL, XA, SRD_W, SRD_W + 3), count=False)
            a('s_waitcnt vmcnt(0)')
            a('v_cmp_ne_u32 vcc, s%d, v%d' % (S_XCC, XL))
            a('s_mov_b32 s%d, %d' % (S_FAST, o.fast))
            a('s_cbranch_vccz L_xok')
        a('s_mov_b32 s%d, 0' % S_FAST)
        a('s_sub_u32 s%d, s%d, 1' % (S_CNT, S_CNT))
        a('s_cbranch_scc0 L_xt')
        a.label('L_xok')
        self.stamp(13)
        a('v_mov_b32 v%d, s%d' % (FT, S_FAST))
        a('s_mov_b64 exec, 0xff')
        a('ds_write_b64 v%d, %s offset:%d' % (VF, vr(FT, 2), LDS_F))
        a('s_mov_b64 exec, -1')
        a('s_mov_b32 s%d, 0x%x' % (S_CNT, o.spin))
        a('s_waitcnt lgkmcnt(0)')
        a('s_barrier')

        def in_loads():
            for i in range(4):
                a('buffer_load_dwordx4 %s, v%d, s[%d:%d], 0 offen offset:%d sc1' % (
                    vr(IN + 4 * i), CO, SRD_W, SRD_W + 3, 1024 * i), count=False)

        if o.warm == 0:
            in_loads()
        if o.warm == 2:
            wa = XA if o.xd else 15
            a('buffer_load_dword v%d, v%d, s[%d:%d], 0 offen sc1' % (wa, wa, SRD_W, SRD_W + 3), count=False)
        a('s_barrier')
        self.stamp(9)
        if o.warm:
            in_loads()
        a.label('L_chk')
        a('s_waitcnt vmcnt(0)')
        a('v_xor_b32 v%d, s%d, v%d' % (t0, S_TAG, IN + 3))
        for i in range(1, 4):
            a('v_bitop3_b32 v%d, v%d, s%d, v%d bitop3:0xbe' % (t0, IN + 4 * i + 3, S_TAG, t0))
        a('v_cmp_ne_u32 vcc, 0, v%d' % t0)
        a('s_cbranch_vccz L_ok')
        a('s_mov_b64 exec, vcc')
        in_loads()
        a('s_mov_b64 exec, -1')
        a('s_sub_u32 s%d, s%d, 1' % (S_CNT, S_CNT))
        a('s_cbranch_scc0 L_chk')
        a('s_endpgm')
        a.label('L_ok')
        a.flush_hazards()
        self.stamp(10)
        unp = []
        for i in range(4):
            for hf in range(2):
                unp.append('v_lshlrev_b32 v%d, 16, v%d' % (U + 4 * i + 2 * hf, IN + 4 * i + hf))
                unp.append('v_and_b32 v%d, 0xffff0000, v%d' % (U + 4 * i + 2 * hf + 1, IN + 4 * i + hf))

        def fill(n):
            for _ in range(n):
                if unp:
                    a(unp.pop(0))
        a('v_max3_f32 v%d, v%d, v%d, v%d' % (t0, IN + 2, IN + 6, TQ))
        a('v_max3_f32 v%d, v%d, v%d, v%d' % (t0, IN + 10, IN + 14, t0))
        fill(2)
        a('v_max_f32_dpp v%d, v%d, v%d row_ror:8 row_mask:0xf bank_mask:0xf' % (t0, t0, t0))
        a('v_mov_b32 v%d, v%d' % (t1, t0))
        fill(2)
        a('v_permlane16_swap_b32 v%d, v%d' % (t0, t1))
        a('v_max_f32 v%d, v%d, v%d' % (t0, t0, t1))
        a('v_mov_b32 v%d, v%d' % (t1, t0))
        fill(2)
        a('v_permlane32_swap_b32 v%d, v%d' % (t0, t1))
        a('v_max_f32 v%d, v%d, v%d' % (t0, t0, t1))
        for i in range(4):
            a('v_sub_f32 v%d, v%d, v%d' % (W + i, IN + 4 * i + 2, t0))
        a('v_sub_f32 v%d, v%d, v%d' % (WT, TQ, t0))
        for x in (W, W + 1, W + 2, W + 3, WT):
            a('v_exp_f32 v%d, v%d' % (x, x))
            fill(2)
        fill(16)
        a('v_add_f32 v%d, v%d, v%d' % (LS, W, W + 1))
        a('v_add_f32 v%d, v%d, v%d' % (LT, W + 2, W + 3))
        for i in range(4):
            sel = 'op_sel:[0,%d,0] op_sel_hi:[1,%d,1]' % (i & 1, i & 1)
            for hf in range(2):
                if i == 0:
                    a('v_pk_mul_f32 %s, %s, %s op_sel:[0,0] op_sel_hi:[1,0]' % (
                        vr(A + 2 * hf, 2), vr(U + 2 * hf, 2), vr(W, 2)))
                else:
                    a('v_pk_fma_f32 %s, %s, %s, %s %s' % (
                        vr(A + 2 * hf, 2), vr(U + 4 * i + 2 * hf, 2), vr(W + (i & 2), 2), vr(A + 2 * hf, 2), sel))
            if i == 0:
                a('v_add_f32 v%d, v%d, v%d' % (LS, LS, LT))
            if i == 1:
                a('v_add_f32_dpp v%d, v%d, v%d row_ror:8 row_mask:0xf bank_mask:0xf' % (LS, LS, LS))
            if i == 2:
                a('v_mov_b32 v%d, v%d' % (LT, LS))
        a('v_permlane16_swap_b32 v%d, v%d' % (LS, LT))
        a('v_add_f32 v%d, v%d, v%d' % (LS, LS, LT))
        a('v_permlane32_swap_b32 v%d, v%d' % (A, A + 2))
        a('v_permlane32_swap_b32 v%d, v%d' % (A + 1, A + 3))
        a('v_mov_b32 v%d, v%d' % (LT, LS))
        a('v_pk_add_f32 %s, %s, %s' % (vr(A, 2), vr(A, 2), vr(A + 2, 2)))
        a('s_cmp_lg_u32 s97, 0')
        a('v_permlane32_swap_b32 v%d, v%d' % (LS, LT))
        a('v_permlane16_swap_b32 v%d, v%d' % (A, A + 1))
        a('v_add_f32 v%d, v%d, v%d' % (LS, LS, LT))
        a('v_add_f32 v%d, v%d, v%d' % (LS, LS, WT))
        a('v_add_f32 v%d, v%d, v%d' % (A, A, A + 1))
        a('v_rcp_f32 v%d, v%d' % (LS, LS))
        a('v_add_f32_dpp v%d, v%d, v%d row_ror:8 row_mask:0xf bank_mask:0xf' % (A, A, A))
        a('v_fmac_f32 v%d, v%d, v%d' % (A, WT, TV))
        a('v_mul_f32 v%d, v%d, v%d' % (A, A, LS))
        a('v_cvt_pk_bf16_f32 v%d, v%d, v%d' % (A, A, A))
        if o.dry:
            a('s_cbranch_scc1 L_dry')
        a('s_mov_b64 exec, s[%d:%d]' % (S_MASKLO, S_MASKLO + 1))
        a('global_store_short v%d, v%d, s[16:17]' % (COUT, A), count=False)
        a('s_cmp_lg_u32 s%d, 0' % S_SPLIT)
        a('s_cbranch_scc1 L_done')
        a('s_mov_b64 exec, 1')
        a('buffer_store_dword v%d, off, s[%d:%d], s96 sc1' % (FT + 1, SRD_W, SRD_W + 3), count=False)
        a.label('L_done')
        self.stamp(11)
        self.dump_stamps(t0, (0, 9, 10, 11, 12, 13))
        a('s_endpgm')

    def build(self):
        o = self.o
        main = NAME + '_kernel'
        head = ['; tree-attention decode: split-KV flash decoding with an in-launch tagged combine (own generator)']
        head.append('; @launch grid=(256,1,1) block=(320,1,1) lds=%d' % max(LDS_TOTAL, o.lds))
        head += ['.amdgcn_target "amdgcn-amd-amdhsa--gfx950"', '.text']
        a = self.a
        a.raw('.globl %s' % main)
        a.raw('.p2align %d' % o.align)
        a.raw('.type %s,@function' % main)
        self.main_kernel(main)
        tail = ['.section .rodata,"a"', '.p2align 6', '.amdhsa_kernel %s' % main,
                '  .amdhsa_next_free_vgpr 256',
                '  .amdhsa_next_free_sgpr 102',
                '  .amdhsa_accum_offset 256',
                '  .amdhsa_group_segment_fixed_size 0',
                '  .amdhsa_kernarg_size 72',
                '  .amdhsa_user_sgpr_count 2',
                '  .amdhsa_user_sgpr_kernarg_segment_ptr 1',
                '  .amdhsa_system_sgpr_workgroup_id_x 1',
                '.end_amdhsa_kernel']
        return '\n'.join(head) + '\n' + a.text() + '\n'.join(tail) + '\n'


def main():
    p = argparse.ArgumentParser()
    p.add_argument('--prof', type=int, default=0)
    p.add_argument('--lds', type=int, default=0)
    p.add_argument('--align', type=int, default=12)
    p.add_argument('--fast', type=int, default=1)
    p.add_argument('--mid', type=int, default=0)
    p.add_argument('--dry', type=int, default=0)
    p.add_argument('--xtry', type=int, default=4)
    p.add_argument('--spin', type=int, default=200000)
    p.add_argument('--kfl', type=int, default=0)
    p.add_argument('--xd', type=int, default=0)
    p.add_argument('--xs', type=int, default=0)
    p.add_argument('--xw', type=int, default=0)
    p.add_argument('--warm', type=int, default=0)
    p.add_argument('--kf', default='')
    p.add_argument('--vf', default='')
    p.add_argument('-o', default='var/f4.s')
    args = p.parse_args()
    args.kf = args.kf.replace('NT', ' nt'); args.vf = args.vf.replace('NT', ' nt')
    g = Gen(args)
    txt = g.build()
    open(args.o, 'w').write(txt)
    print('wrote', args.o, 'max outstanding', g.a.maxout, 'lines', txt.count('\n'), file=sys.stderr)


if __name__ == '__main__':
    main()
```

```python
import argparse
import math
import struct
import sys

from asmlib import Asm

NAME = 'standalone__tree_speculative_verify_tree_attention_over_candidate_token_tree__decode'


def f32(x):
    return '0x%08x' % struct.unpack('<I', struct.pack('<f', x))[0]


C_SCALE = (128.0 ** -0.5) * math.log2(math.e)
NEG_BIG = -1.0e9 * math.log2(math.e)

CSTRIDE = 4224
GSTRIDE = 32 * CSTRIDE
XT_OFF = 4096
EPOCH_OFF = CSTRIDE + 4096
XS_OFF = 2 * CSTRIDE + 4096
PROF_OFF = 3 << 20
WS_RECORDS = 8 * GSTRIDE

LDS_M = 0
LDS_F = 256
LDS_ACC = 512
LDS_TOTAL = 512 + 4 * 4224

S_GROUP, S_SPLIT = 22, 23
SRD_K, SRD_V, SRD_W = 24, 28, 32
S_OFF = 40
S_SEL_LO, S_SEL_HI = 48, 49
S_C = 50
S_TAG = 51
S_MASKLO = 52
S_MASKW = 54
S_GB = 55
S_CNT = 57
S_EPOCH = 59
S_ROW = 61
S_TS = 64
S_XCC = 99
S_FAST = 100


def soff(t):
    return '0' if t == 0 else 's%d' % (S_OFF + t)


def vr(base, n=4):
    return 'v[%d:%d]' % (base, base + n - 1)


class Gen:
    def __init__(self, args):
        self.o = args
        self.a = Asm()

    def stamp(self, col):
        if self.o.prof:
            self.a('s_memrealtime s[%d:%d]' % (S_TS + 2 * col, S_TS + 2 * col + 1))

    def dump_stamps(self, vt, cols):
        if not self.o.prof:
            return
        a = self.a
        a('s_waitcnt lgkmcnt(0)')
        a('s_mul_i32 s36, s2, 5')
        a('s_add_u32 s36, s36, s3')
        a('s_lshl_b32 s36, s36, 6')
        a('s_add_u32 s36, s36, 0x%x' % PROF_OFF)
        a('s_mov_b64 exec, 1')
        a('v_mov_b32 v%d, s36' % vt)
        for i, r in [(i, S_TS + 2 * i) for i in cols] + [(14, S_FAST), (15, S_CNT)]:
            a('v_mov_b32 v%d, s%d' % (vt + 1, r))
            a('buffer_store_dword v%d, v%d, s[%d:%d], 0 offen offset:%d' % (vt + 1, vt, SRD_W, SRD_W + 3, 4 * i),
              count=False)
            a('s_waitcnt vmcnt(0)')

    def swap_red(self, op, x, t):
        a = self.a
        a('v_mov_b32 v%d, v%d' % (t, x))
        a('v_permlane16_swap_b32 v%d, v%d' % (x, t))
        a('%s v%d, v%d, v%d' % (op, x, x, t))
        a('v_mov_b32 v%d, v%d' % (t, x))
        a('v_permlane32_swap_b32 v%d, v%d' % (x, t))
        a('%s v%d, v%d, v%d' % (op, x, x, t))

    def srd_w(self):
        a = self.a
        a('s_mov_b32 s%d, s20' % SRD_W)
        a('s_mov_b32 s%d, s21' % (SRD_W + 1))
        a('s_mov_b32 s%d, 0x%x' % (SRD_W + 2, (4 << 20) if self.o.prof else WS_RECORDS))
        a('s_mov_b32 s%d, 0x00020000' % (SRD_W + 3))

    def main_kernel(self, label):
        o, a = self.o, self.a
        VK, VV, VQ = 1, 2, 3
        t0, t1, t2 = 4, 5, 6
        VPS = 7
        VLDS, VLW, VLR = 61, 62, 63
        Q = ACC = 8
        S = 24
        VB = [64, 96, 128, 160]
        K = 128
        PLO, PHI, TMP = 192, 208, 224
        M4, L4 = 24, 28
        G = 40

        a.label(label)
        self.stamp(0)
        a('s_load_dwordx16 s[4:19], s[0:1], 0')
        a('s_load_dwordx2 s[20:21], s[0:1], 64')
        a('s_cmp_ge_u32 s2, 256')
        a('s_cbranch_scc1 L_end')
        a('v_lshrrev_b32 v1, 6, v0')
        a('v_and_b32 v0, 63, v0')
        a('v_readfirstlane_b32 s3, v1')
        a('s_and_b32 s%d, s2, 7' % S_GROUP)
        if o.gx:
            a('s_xor_b32 s%d, s%d, %d' % (S_GROUP, S_GROUP, o.gx))
        a('s_lshr_b32 s%d, s2, 3' % S_SPLIT)
        a('s_lshl_b32 s36, s%d, 22' % S_GROUP)
        a('s_lshl_b32 s37, s%d, 17' % S_SPLIT)
        a('s_add_u32 s36, s36, s37')
        a('v_lshrrev_b32 v%d, 4, v0' % t0)
        a('v_lshlrev_b32 v%d, 4, v0' % VV)
        a('s_cmp_eq_u32 s3, 4')
        a('s_cbranch_scc1 L_cons')
        a('s_lshl_b32 s37, s3, 15')
        a('s_add_u32 s36, s36, s37')
        if o.kfl:
            a('v_and_b32 v%d, 8, v0' % t1)
            a('v_lshlrev_b32 v%d, 4, v%d' % (t0, t0))
            a('v_lshl_add_u32 v%d, v%d, 3, v%d' % (t0, t1, t0))
            a('v_and_b32 v%d, 3, v0' % t1)
            a('v_bfe_u32 v%d, v0, 2, 1' % t2)
            a('v_lshl_add_u32 v%d, v%d, 2, v%d' % (t1, t1, t2))
            a('v_lshl_add_u32 v%d, v%d, 8, v%d' % (VK, t1, t0))
            a('v_and_b32 v%d, 7, v0' % t1)
            a('v_lshl_add_u32 v%d, v%d, 8, v%d' % (VQ, t1, t0))
        else:
            a('v_and_b32 v%d, 3, v0' % t1)
            a('v_bfe_u32 v%d, v0, 2, 2' % t2)
            a('v_lshl_add_u32 v%d, v%d, 2, v%d' % (t1, t1, t2))
            a('v_lshlrev_b32 v%d, 8, v%d' % (VK, t1))
            a('v_lshl_add_u32 v%d, v%d, 4, v%d' % (VK, t0, VK))
            a('v_and_b32 v%d, 7, v0' % t1)
            a('v_lshlrev_b32 v%d, 8, v%d' % (VQ, t1))
            a('v_lshl_add_u32 v%d, v%d, 4, v%d' % (VQ, t0, VQ))
        a('s_lshl_b32 s37, s%d, 11' % S_GROUP)
        a('v_add_u32 v%d, s37, v%d' % (VQ, VQ))
        for t in range(1, 8):
            a('s_movk_i32 s%d, 0x%x' % (S_OFF + t, t * 4096))
        for srd in (SRD_K, SRD_V):
            a('s_mov_b32 s%d, 0x8000' % (srd + 2))
            a('s_mov_b32 s%d, 0x00020000' % (srd + 3))
        a('s_waitcnt lgkmcnt(0)')
        a('s_add_u32 s%d, s6, s36' % SRD_K)
        a('s_addc_u32 s%d, s7, 0' % (SRD_K + 1))
        self.stamp(1)

        def kload(t):
            for j in range(4):
                a('buffer_load_dwordx4 %s, v%d, s[%d:%d], %s offen offset:%d%s' % (
                    vr(K + 16 * t + 4 * j), VK, SRD_K, SRD_K + 3, soff(t),
                    512 * (j >> 1) + 128 * (j & 1) if o.kfl else 64 * j, o.kf), tag='k%d_%d' % (t, j))

        def vload4(blk, half):
            for i in range(4 * half, 4 * half + 4):
                a('buffer_load_dwordx4 %s, v%d, s[%d:%d], %s offen offset:%d%s' % (
                    vr(VB[blk] + 4 * i), VV, SRD_V, SRD_V + 3, soff(2 * blk + (i >> 2)), 1024 * (i & 3), o.vf),
                  tag='v%d_%d' % (blk, i))

        def kmfma(t):
            a.wait_vm('q3' if t == 0 else 'k%d_3' % t)
            for j in range(4):
                a('v_mfma_f32_16x16x32_bf16 %s, %s, %s, %s' % (
                    vr(S + 4 * t), vr(K + 16 * t + 4 * j), vr(Q + 4 * j), '0' if j == 0 else vr(S + 4 * t)))

        def f0():
            a('s_add_u32 s%d, s8, s36' % SRD_V)
            a('s_addc_u32 s%d, s9, 0' % (SRD_V + 1))
            a('s_lshl_b32 s36, s3, 2')
            a('v_lshl_add_u32 v%d, v0, 5, s36' % VLDS)

        def f1():
            self.srd_w()
            a('s_mul_i32 s36, s3, 4224')
            a('v_add_u32 v%d, s36, v%d' % (VLW, VV))

        def f2():
            a('v_and_b32 v%d, 3, v0' % t0)
            a('v_mul_u32_u24 v%d, 1056, v%d' % (VLR, t0))

        def f3():
            a('v_bfe_u32 v%d, v0, 2, 1' % t0)
            a('v_lshl_add_u32 v%d, v%d, 7, v%d' % (VLR, t0, VLR))

        def f4():
            a('v_lshrrev_b32 v%d, 3, v0' % t2)
            a('v_lshl_add_u32 v%d, v%d, 4, v%d' % (VLR, t2, VLR))

        def f5():
            a('s_lshl_b32 s37, s3, 8')
            a('v_add_u32 v%d, s37, v%d' % (VLR, VLR))

        def f6():
            a('s_mov_b32 s%d, 0x05040100' % S_SEL_LO)
            a('s_mov_b32 s%d, 0x07060302' % S_SEL_HI)
            a('s_mov_b32 s%d, 0x00ff00ff' % S_MASKLO)
            a('s_mov_b32 s%d, 0x00ff00ff' % (S_MASKLO + 1))
            a('v_mul_u32_u24 v%d, %d, v%d' % (VPS, 4 * CSTRIDE, t2))

        def f7():
            a('s_mov_b32 s%d, %s' % (S_C, f32(C_SCALE)))
            a('s_mul_i32 s37, s%d, %d' % (S_GROUP, GSTRIDE))
            a('s_add_u32 s36, s36, s37')
            a('s_lshl_b32 s37, s%d, 7' % S_SPLIT)
            a('s_add_u32 s36, s36, s37')
            a('v_lshl_add_u32 v%d, v%d, 4, v%d' % (VPS, t1, VPS))

        def f8():
            a('v_add_u32 v%d, s36, v%d' % (VPS, VPS))

        MC = TMP + 8
        if o.kfl:
            self.k_phase_lines(kload, vload4, [f0, f1, f2, f3, f4, f5, f6, f7, f8], VQ, Q, K, S, PLO, PHI, TMP, MC)
        else:
            kload(0)
            f0()
            for j in range(4):
                a('global_load_dwordx4 %s, v%d, s[4:5] offset:%d' % (vr(Q + 4 * j), VQ, 64 * j), tag='q%d' % j)
            fl = [f1, f2, f3, f4, f5, f6, f7]
            for t in range(1, 8):
                fl[t - 1]()
                kload(t)
            f8()
            vload4(0, 0)
            self.stamp(2)
            kmfma(0)
            kmfma(1)
            vload4(0, 1)
            kmfma(2)
            kmfma(3)
            vload4(1, 0)
            kmfma(4)
            vload4(1, 1)
            kmfma(5)
            a('v_max3_f32 v%d, v%d, v%d, v%d' % (t0, S, S + 1, S + 2))
            a('v_max3_f32 v%d, v%d, v%d, v%d' % (t1, S + 3, S + 4, S + 5))
            idx, flip = 6, 0
            while idx < 20:
                d = (t0, t1)[flip]
                a('v_max3_f32 v%d, v%d, v%d, v%d' % (d, d, S + idx, S + idx + 1))
                idx += 2
                flip ^= 1
            vload4(2, 0)
            kmfma(6)
            kmfma(7)
            self.stamp(3)
            vload4(2, 1)
            while idx < 32:
                d = (t0, t1)[flip]
                a('v_max3_f32 v%d, v%d, v%d, v%d' % (d, d, S + idx, S + idx + 1))
                idx += 2
                flip ^= 1
            a('v_max_f32 v%d, v%d, v%d' % (t0, t0, t1))
            self.swap_red('v_max_f32', t0, t1)
            MC = TMP + 8
            a('v_mul_f32 v%d, s%d, v%d' % (MC, S_C, t0))
            for i in range(32):
                a('v_fma_f32 v%d, v%d, s%d, -v%d' % (S + i, S + i, S_C, MC))
            vload4(3, 0)
            for i in range(32):
                a('v_exp_f32 v%d, v%d' % (S + i, S + i))
            vload4(3, 1)
            self.stamp(4)
            for r in range(4):
                a('v_mov_b32 v%d, 0x3f803f80' % (TMP + 4 + r))
            for i in range(16):
                a('v_cvt_pk_bf16_f32 v%d, v%d, v%d' % (S + 2 * i, S + 2 * i, S + 2 * i + 1))
            for i in range(16):
                a('v_cndmask_b32 v%d, 0, v%d, s[%d:%d]' % (PLO + i, S + 2 * i, S_MASKLO, S_MASKLO + 1))
            for b in range(4):
                a('v_mfma_f32_16x16x32_bf16 %s, %s, %s, %s' % (
                    vr(TMP + 12), vr(TMP + 4), vr(PLO + 4 * b), '0' if b == 0 else vr(TMP + 12)))
            for i in range(16):
                a('v_cndmask_b32 v%d, v%d, 0, s[%d:%d]' % (PHI + i, S + 2 * i, S_MASKLO, S_MASKLO + 1))
        a('s_mov_b64 exec, 0xff')
        a('ds_write2_b32 v%d, v%d, v%d offset0:%d offset1:%d' % (VLDS, MC, TMP + 12, LDS_M // 4, LDS_M // 4 + 4))
        a('s_mov_b64 exec, -1')
        a('v_lshlrev_b32 v%d, 5, v%d' % (VLDS, t2))
        self.stamp(5)

        def mid_barrier():
            a('s_waitcnt lgkmcnt(0)')
            a('s_barrier')
            a('ds_read_b128 %s, v%d offset:%d' % (vr(M4), VLDS, LDS_M))
            a('ds_read_b128 %s, v%d offset:%d' % (vr(L4), VLDS, LDS_M + 16))
            a('ds_read_b64 %s, v%d offset:%d' % (vr(G + 2, 2), VLDS, LDS_F))
            self.stamp(6)

        def factors():
            a('s_waitcnt lgkmcnt(0)')
            a('v_max3_f32 v%d, v%d, v%d, v%d' % (t0, M4, M4 + 1, M4 + 2))
            a('v_readfirstlane_b32 s%d, v%d' % (S_FAST, G + 2))
            a('v_max_f32 v%d, v%d, v%d' % (t0, t0, M4 + 3))
            for w in range(4):
                a('v_sub_f32 v%d, v%d, v%d' % (M4 + w, M4 + w, t0))
            for w in range(4):
                a('v_exp_f32 v%d, v%d' % (M4 + w, M4 + w))
            a('v_mul_f32 v%d, v%d, v%d' % (t1, L4, M4))
            for w in range(1, 4):
                a('v_fmac_f32 v%d, v%d, v%d' % (t1, L4 + w, M4 + w))
            a('v_rcp_f32 v%d, v%d' % (L4, t1))
            a('v_log_f32 v%d, v%d' % (t1, t1))
            for w in range(4):
                a('v_mul_f32 v%d, v%d, v%d' % (M4 + w, M4 + w, L4))
            a('v_add_f32 v%d, v%d, v%d' % (G + 2, t0, t1))

        for blk in range(4):
            if blk == o.mid:
                mid_barrier()
            if blk == o.mid + 1:
                factors()
            for k in range(4):
                if blk == 3 or k == 0 or k == 2:
                    kk = k if blk == 3 else k + 1
                    a.wait_vm('v%d_%d' % (blk, 2 * kk + 1))
                for e in range(8):
                    x = VB[blk] + 4 * (2 * k) + (e >> 1)
                    y = VB[blk] + 4 * (2 * k + 1) + (e >> 1)
                    a('v_perm_b32 v%d, v%d, v%d, s%d' % (TMP + 4 * e + k, y, x, S_SEL_HI if e & 1 else S_SEL_LO))
            if blk == 3:
                self.stamp(7)
            for e in range(8):
                ep = e & 3
                first = blk == 0 and e < 4
                a('v_mfma_f32_16x16x32_bf16 %s, %s, %s, %s' % (
                    vr(ACC + 4 * ep), vr(TMP + 4 * e), vr((PLO if e < 4 else PHI) + 4 * blk),
                    '0' if first else vr(ACC + 4 * ep)))
        for ep in range(4):
            a('ds_write_b128 v%d, %s offset:%d' % (VLW, vr(ACC + 4 * ep), LDS_ACC + 1056 * ep))
        a('s_waitcnt lgkmcnt(0)')
        a('s_barrier')
        R = TMP
        for w in range(4):
            a('ds_read_b128 %s, v%d offset:%d' % (vr(R + 4 * w), VLR, LDS_ACC + 4224 * w))
        a('s_cmp_lg_u32 s%d, 0' % S_FAST)
        for w in range(4):
            a('s_waitcnt lgkmcnt(%d)' % (3 - w))
            sel = 'op_sel:[0,%d,0] op_sel_hi:[1,%d,1]' % (w & 1, w & 1)
            for hf in range(2):
                if w == 0:
                    a('v_pk_mul_f32 %s, %s, %s op_sel:[0,0] op_sel_hi:[1,0]' % (
                        vr(R + 2 * hf, 2), vr(R + 2 * hf, 2), vr(M4, 2)))
                else:
                    a('v_pk_fma_f32 %s, %s, %s, %s %s' % (
                        vr(R + 2 * hf, 2), vr(R + 4 * w + 2 * hf, 2), vr(M4 + (w & 2), 2), vr(R + 2 * hf, 2), sel))
        a('v_cvt_pk_bf16_f32 v%d, v%d, v%d' % (G, R, R + 1))
        a('v_cvt_pk_bf16_f32 v%d, v%d, v%d' % (G + 1, R + 2, R + 3))
        a('s_cbranch_scc0 L_slow')
        a('buffer_store_dwordx4 %s, v%d, s[%d:%d], 0 offen' % (vr(G), VPS, SRD_W, SRD_W + 3))
        if o.prof:
            a.label('L_pdone')
            self.stamp(8)
            a('s_mov_b32 s%d, 0x%x' % (S_CNT, o.spin))
            self.dump_stamps(t0, range(9))
        a('s_endpgm')
        a.label('L_slow')
        a('buffer_store_dwordx4 %s, v%d, s[%d:%d], 0 offen sc1' % (vr(G), VPS, SRD_W, SRD_W + 3))
        if o.prof:
            a('s_branch L_pdone')
        a.label('L_end')
        a('s_endpgm')
        self.consumer()

    def k_phase_lines(self, kload, vload4, fl, VQ, Q, K, S, PLO, PHI, TMP, MC):
        a = self.a
        t0, t1 = 4, 5
        VLO, VHI = 56, 57
        T = [(40, 44, 48), (16, 20, 52)]

        def acc(t):
            tt = T[(t >> 1) & 1]
            return (S + 2 * t, tt[0]) if t % 2 == 0 else (tt[1], tt[2])

        def kmfma(t):
            a.wait_vm('q1' if t == 0 else 'k%d_3' % t)
            for hf in range(2):
                for st in range(2):
                    d = acc(t)[st]
                    a('v_mfma_f32_16x16x32_bf16 %s, %s, %s, %s' % (
                        vr(d), vr(K + 16 * t + 8 * st + 4 * hf), vr(Q + 4 * hf), vr(d) if hf else '0'))

        def comb(t):
            x, y = acc(t)
            d = S + 4 * (t >> 1)
            for i in range(4):
                a('v_permlane32_swap_b32 v%d, v%d' % (x + i, y + i))
            for i in range(4):
                if t % 2 == 0:
                    a('v_add_f32_dpp v%d, v%d, v%d row_ror:8 row_mask:0xf bank_mask:0x3' % (d + i, y + i, x + i))
                else:
                    a('v_add_f32_dpp v%d, v%d, v%d row_ror:8 row_mask:0xf bank_mask:0xc' % (d + i, x + i, y + i))

        kload(0)
        fl[0]()
        for j in range(2):
            a('global_load_dwordx4 %s, v%d, s[4:5] offset:%d' % (vr(Q + 4 * j), VQ, 128 * j), tag='q%d' % j)
        for t in range(1, 8):
            fl[t]()
            kload(t)
        fl[8]()
        vload4(0, 0)
        self.stamp(2)
        a('v_cndmask_b32 v%d, 0, -1, s[%d:%d]' % (VLO, S_MASKLO, S_MASKLO + 1))
        a('v_cndmask_b32 v%d, -1, 0, s[%d:%d]' % (VHI, S_MASKLO, S_MASKLO + 1))
        kmfma(0)
        kmfma(1)
        comb(0)
        vload4(0, 1)
        kmfma(2)
        comb(1)
        kmfma(3)
        comb(2)
        vload4(1, 0)
        kmfma(4)
        comb(3)
        vload4(1, 1)
        kmfma(5)
        comb(4)
        a('v_max3_f32 v%d, v%d, v%d, v%d' % (t0, S, S + 1, S + 2))
        a('v_max3_f32 v%d, v%d, v%d, v%d' % (t1, S + 3, S + 4, S + 5))
        a('v_max3_f32 v%d, v%d, v%d, v%d' % (t0, t0, S + 6, S + 7))
        vload4(2, 0)
        kmfma(6)
        comb(5)
        a('v_max3_f32 v%d, v%d, v%d, v%d' % (t1, t1, S + 8, S + 9))
        a('v_max3_f32 v%d, v%d, v%d, v%d' % (t0, t0, S + 10, S + 11))
        kmfma(7)
        comb(6)
        self.stamp(3)
        vload4(2, 1)
        comb(7)
        a('v_max3_f32 v%d, v%d, v%d, v%d' % (t1, t1, S + 12, S + 13))
        a('v_max3_f32 v%d, v%d, v%d, v%d' % (t0, t0, S + 14, S + 15))
        a('v_max_f32 v%d, v%d, v%d' % (t0, t0, t1))
        for r in range(2):
            a('v_mov_b32 v%d, 0x3f803f80' % (TMP + 4 + r))
        a('v_max_f32_dpp v%d, v%d, v%d row_ror:8 row_mask:0xf bank_mask:0xf' % (t0, t0, t0))
        self.swap_red('v_max_f32', t0, t1)
        a('v_mul_f32 v%d, s%d, v%d' % (MC, S_C, t0))
        for i in range(16):
            a('v_fma_f32 v%d, v%d, s%d, -v%d' % (S + i, S + i, S_C, MC))
        vload4(3, 0)
        for i in range(16):
            a('v_exp_f32 v%d, v%d' % (S + i, S + i))
        vload4(3, 1)
        self.stamp(4)
        for r in range(2, 4):
            a('v_mov_b32 v%d, 0x3f803f80' % (TMP + 4 + r))
        for i in range(8):
            a('v_cvt_pk_bf16_f32 v%d, v%d, v%d' % (S + 2 * i, S + 2 * i, S + 2 * i + 1))
        rot = ' row_ror:8 row_mask:0xf bank_mask:0xf'
        for i in range(8):
            a('v_and_b32 v%d, v%d, v%d' % (PLO + 4 * (i >> 1) + (i & 1), S + 2 * i, VLO))
        for i in range(8):
            a('v_and_b32_dpp v%d, v%d, v%d%s' % (PLO + 4 * (i >> 1) + 2 + (i & 1), S + 2 * i, VLO, rot))
        for b in range(4):
            a('v_mfma_f32_16x16x32_bf16 %s, %s, %s, %s' % (
                vr(TMP + 12), vr(TMP + 4), vr(PLO + 4 * b), '0' if b == 0 else vr(TMP + 12)))
        for i in range(8):
            a('v_and_b32_dpp v%d, v%d, v%d%s' % (PHI + 4 * (i >> 1) + (i & 1), S + 2 * i, VHI, rot))
        for i in range(8):
            a('v_and_b32 v%d, v%d, v%d' % (PHI + 4 * (i >> 1) + 2 + (i & 1), S + 2 * i, VHI))

    def consumer(self):
        o, a = self.o, self.a
        VV, t0, t1, t2 = 2, 4, 5, 6
        CO, TQ, TK, TV, COUT, XA, XL, VF = 7, 8, 9, 10, 11, 12, 13, 14
        FT = 16
        IN = 20
        U = 36
        W = 52
        A = 56
        LS, LT, WT = 60, 61, 62
        a.raw('.p2align 6')
        a.label('L_cons')
        a.flush_hazards()
        a('s_setprio 3')
        a('s_lshr_b32 s36, s%d, 2' % S_SPLIT)
        a('s_and_b32 s39, s%d, 3' % S_SPLIT)
        a('s_lshl_b32 s37, s%d, 3' % S_GROUP)
        a('s_add_u32 s37, s37, s36')
        a('s_lshl_b32 s%d, s37, 8' % S_ROW)
        a('s_mul_i32 s%d, s%d, %d' % (S_GB, S_GROUP, GSTRIDE))
        a('s_add_u32 s96, s%d, %d' % (S_GB, EPOCH_OFF))
        a('v_lshlrev_b32 v%d, 2, v0' % t2)
        a('v_add_u32 v%d, s%d, v%d' % (TQ, S_ROW, t2))
        a('s_lshl_b32 s38, s%d, 8' % S_GROUP)
        a('v_add_u32 v%d, s38, v%d' % (TK, t2))
        a('v_and_b32 v%d, 7, v0' % t1)
        a('v_lshl_add_u32 v%d, v%d, 3, v%d' % (t1, t0, t1))
        a('s_lshl_b32 s36, s39, 5')
        a('v_add_lshl_u32 v%d, v%d, s36, 1' % (t1, t1))
        a('v_add_u32 v%d, s%d, v%d' % (COUT, S_ROW, t1))
        a('v_add_u32 v%d, s38, v%d' % (TV, t1))
        if o.xd:
            a('s_getreg_b32 s%d, hwreg(HW_REG_XCC_ID, 0, 4)' % S_XCC)
            a('s_mul_i32 s36, s%d, %d' % (S_SPLIT, CSTRIDE))
            a('s_add_u32 s36, s36, s%d' % S_GB)
            a('v_add_u32 v%d, s36, v%d' % (CO, VV))
            a('v_lshl_add_u32 v%d, v0, 6, s36' % XA)
            a('s_or_b32 s%d, s%d, 0x40' % (S_XCC, S_XCC))
            a('v_mov_b32 v%d, s%d' % (XL, S_XCC))
            a('s_lshl_b32 s98, s%d, 5' % S_GROUP)
            a('s_add_u32 s37, s98, s%d' % S_SPLIT)
            a('v_mov_b32 v%d, s37' % VF)
            a('s_waitcnt lgkmcnt(0)')
            def xst():
                a('s_mov_b64 exec, 1')
                a('global_store_byte v%d, v%d, s[18:19]' % (VF, XL), count=False)
                a('s_mov_b64 exec, -1')
            if not o.xd & 4:
                xst()
            a('s_load_dword s%d, s[20:21], s96' % S_EPOCH)
            a('s_load_dword s%d, s[14:15], 0' % S_MASKW)
            a('global_load_dword v%d, v%d, s[4:5]' % (TQ, TQ), count=False)
            a('global_load_dword v%d, v%d, s[10:11]' % (TK, TK), count=False)
            a('global_load_ushort v%d, v%d, s[12:13]' % (TV, TV), count=False)
            self.srd_w()
            if o.warm == 1:
                a('buffer_load_dword v%d, v%d, s[%d:%d], 0 offen sc1' % (XA, XA, SRD_W, SRD_W + 3), count=False)
            a('s_mul_i32 s%d, s%d, 0x01010101' % (S_XCC, S_XCC))
            a('s_mov_b32 s48, s%d' % S_XCC)
            a('s_mov_b32 s49, s%d' % S_XCC)
            a('s_waitcnt lgkmcnt(0)')
            a('s_mul_i32 s%d, s%d, 0x9e3779b1' % (S_TAG, S_EPOCH))
            a('s_add_u32 s%d, s%d, 0x7f4a7c15' % (S_TAG, S_TAG))
            if o.xd & 4:
                xst()
        else:
            if o.xw:
                a('s_add_u32 s40, s%d, %d' % (S_GB, XT_OFF))
                a('s_add_u32 s41, s%d, %d' % (S_GB, XT_OFF + 64))
            a('s_waitcnt lgkmcnt(0)')
            if o.xw:
                a('s_load_dword s42, s[20:21], s40')
                a('s_load_dword s43, s[20:21], s41')
            a('s_load_dword s%d, s[20:21], s96' % S_EPOCH)
            a('s_load_dword s%d, s[14:15], 0' % S_MASKW)
            a('global_load_dword v%d, v%d, s[4:5]' % (TQ, TQ), count=False)
            a('global_load_dword v%d, v%d, s[10:11]' % (TK, TK), count=False)
            a('global_load_ushort v%d, v%d, s[12:13]' % (TV, TV), count=False)
            if o.ow == 1:
                a('global_load_ushort v18, v%d, s[16:17]' % COUT, count=False)
            self.srd_w()
            if o.warm:
                a('s_mul_i32 s36, s%d, %d' % (S_SPLIT, CSTRIDE))
                a('s_add_u32 s36, s36, s%d' % S_GB)
                if o.xs:
                    a('v_lshl_add_u32 v15, v0, 7, s36')
                    a('v_and_b32 v%d, 7, v0' % XA)
                    a('s_add_u32 s98, s%d, %d' % (S_GB, XS_OFF))
                    a('v_mov_b32 v%d, %d' % (XL, CSTRIDE))
                    a('v_mad_u32_u24 v%d, v%d, v%d, s98' % (XA, XA, XL))
                    a('v_cmp_gt_u32 vcc, 32, v0')
                    a('v_cndmask_b32 v15, v%d, v15, vcc' % XA)
                else:
                    a('v_lshl_add_u32 v15, v0, 6, s36')
            if o.warm == 1:
                a('buffer_load_dword v15, v15, s[%d:%d], 0 offen sc1' % (SRD_W, SRD_W + 3), count=False)
            a('s_getreg_b32 s%d, hwreg(HW_REG_XCC_ID, 0, 4)' % S_XCC)
            a('s_mul_i32 s36, s%d, %d' % (S_SPLIT, CSTRIDE))
            a('s_add_u32 s36, s36, s%d' % S_GB)
            a('v_add_u32 v%d, s36, v%d' % (CO, VV))
            a('s_add_u32 s37, s%d, %d' % (S_GB, XT_OFF))
            if not o.xs:
                a('v_and_b32 v%d, 31, v0' % XA)
                a('v_lshl_add_u32 v%d, v%d, 2, s37' % (XA, XA))
            a('v_lshlrev_b32 v%d, 5, v0' % VF)
            a('s_lshl_b32 s38, s%d, 2' % S_SPLIT)
            a('s_add_u32 s37, s37, s38')
            a('s_waitcnt lgkmcnt(0)')
            a('s_mul_i32 s%d, s%d, 0x9e3779b1' % (S_TAG, S_EPOCH))
            a('s_add_u32 s%d, s%d, 0x7f4a7c15' % (S_TAG, S_TAG))
            a('s_add_u32 s%d, s%d, s%d' % (S_XCC, S_XCC, S_TAG))
            a('v_mov_b32 v%d, s%d' % (XL, S_XCC))
            if o.xs:
                a('s_mov_b32 s48, s%d' % S_XCC)
                a('s_mov_b32 s49, s%d' % S_XCC)
                a('s_mov_b64 exec, 0xff')
                a('buffer_store_dword v%d, v%d, s[%d:%d], s38 offen' % (XL, XA, SRD_W, SRD_W + 3), count=False)
            else:
                a('s_mov_b64 exec, 1')
                a('buffer_store_dword v%d, off, s[%d:%d], s37' % (XL, SRD_W, SRD_W + 3), count=False)
            a('s_mov_b64 exec, -1')
        a('v_mov_b32 v%d, s%d' % (FT + 1, S_TAG))
        a('s_lshr_b32 s36, s%d, 2' % S_GROUP)
        a('s_lshl_b32 s36, s36, 4')
        a('s_lshr_b32 s36, s%d, s36' % S_MASKW)
        a('s_lshl_b32 s36, s36, 16')
        a('s_waitcnt vmcnt(0)')
        self.stamp(12)
        a('v_lshlrev_b32 v%d, 16, v%d' % (t0, TQ))
        a('v_lshlrev_b32 v%d, 16, v%d' % (t1, TK))
        a('v_and_b32 v%d, 0xffff0000, v%d' % (TQ, TQ))
        a('v_and_b32 v%d, 0xffff0000, v%d' % (TK, TK))
        a('v_mul_f32 v%d, v%d, v%d' % (t0, t0, t1))
        a('v_fmac_f32 v%d, v%d, v%d' % (t0, TQ, TK))
        a('v_lshlrev_b32 v%d, 16, v%d' % (TV, TV))
        for sh in (8, 4, 2, 1):
            a('v_add_f32_dpp v%d, v%d, v%d row_ror:%d row_mask:0xf bank_mask:0xf' % (t0, t0, t0, sh))
        self.swap_red('v_add_f32', t0, t1)
        a('v_mov_b32 v%d, s36' % t1)
        a('v_sub_f32 v%d, 1.0, v%d' % (t1, t1))
        a('v_mul_f32 v%d, %s, v%d' % (t1, f32(NEG_BIG), t1))
        a('v_mov_b32 v%d, %s' % (t2, f32(C_SCALE)))
        a('v_fma_f32 v%d, v%d, v%d, v%d' % (TQ, t0, t2, t1))
        a('s_mov_b32 s%d, 0x00ff00ff' % S_MASKLO)
        a('s_mov_b32 s%d, 0x00ff00ff' % (S_MASKLO + 1))
        a('s_mov_b32 s97, 1')
        if o.dry:
            a('s_branch L_ok')
        a.label('L_dry')
        a.flush_hazards()
        a('s_mov_b32 s97, 0')
        a('s_mov_b32 s%d, %d' % (S_CNT, o.xtry - 1))
        a.label('L_xt')
        if o.xs:
            bs = (4, 24, 40, 68)
            for i, b in enumerate(bs):
                a('s_load_dwordx8 s[%d:%d], s[20:21], s98' % (b, b + 7))
                a('s_add_u32 s98, s98, %d' % (32 if i < 3 else CSTRIDE - 96))
            a('s_mov_b32 s%d, %d' % (S_FAST, o.fast))
            a('s_waitcnt lgkmcnt(0)')
            prs = [b + 2 * i for b in bs for i in range(4)]
            for r in prs:
                a('s_xor_b64 s[%d:%d], s[%d:%d], s[48:49]' % (r, r + 1, r, r + 1))
            for r in prs[1:]:
                a('s_or_b64 s[4:5], s[4:5], s[%d:%d]' % (r, r + 1))
            a('s_cbranch_scc0 L_xok')
        elif o.xd:
            a('v_lshlrev_b32 v%d, 5, v0' % VF)
            a('s_load_dwordx8 s[40:47], s[18:19], s98%s' % ('' if o.xd & 2 else ' glc'))
            a('s_mov_b32 s%d, %d' % (S_FAST, o.fast))
            a('s_waitcnt lgkmcnt(0)')
            for i in range(4):
                a('s_xor_b64 s[%d:%d], s[%d:%d], s[48:49]' % (40 + 2 * i, 41 + 2 * i, 40 + 2 * i, 41 + 2 * i))
            a('s_or_b64 s[40:41], s[40:41], s[42:43]')
            a('s_or_b64 s[44:45], s[44:45], s[46:47]')
            a('s_or_b64 s[40:41], s[40:41], s[44:45]')
            a('s_cbranch_scc0 L_xok')
        else:
            a('buffer_load_dword v%d, v%d, s[%d:%d], 0 offen sc1' % (XL, XA, SRD_W, SRD_W + 3), count=False)
            a('s_waitcnt vmcnt(0)')
            a('v_cmp_ne_u32 vcc, s%d, v%d' % (S_XCC, XL))
            a('s_mov_b32 s%d, %d' % (S_FAST, o.fast))
            a('s_cbranch_vccz L_xok')
        a('s_mov_b32 s%d, 0' % S_FAST)
        a('s_sub_u32 s%d, s%d, 1' % (S_CNT, S_CNT))
        a('s_cbranch_scc0 L_xt')
        a.label('L_xok')
        self.stamp(13)
        a('v_mov_b32 v%d, s%d' % (FT, S_FAST))
        a('s_mov_b64 exec, 0xff')
        a('ds_write_b64 v%d, %s offset:%d' % (VF, vr(FT, 2), LDS_F))
        a('s_mov_b64 exec, -1')
        a('s_mov_b32 s%d, 0x%x' % (S_CNT, o.spin))
        a('s_waitcnt lgkmcnt(0)')
        a('s_barrier')

        def in_loads():
            for i in range(4):
                a('buffer_load_dwordx4 %s, v%d, s[%d:%d], 0 offen offset:%d sc1' % (
                    vr(IN + 4 * i), CO, SRD_W, SRD_W + 3, 1024 * i), count=False)

        if o.ow == 2:
            a('global_load_ushort v18, v%d, s[16:17]' % COUT, count=False)
        if o.warm == 0:
            in_loads()
        if o.warm == 2:
            wa = XA if o.xd else 15
            a('buffer_load_dword v%d, v%d, s[%d:%d], 0 offen sc1' % (wa, wa, SRD_W, SRD_W + 3), count=False)
        a('s_barrier')
        self.stamp(9)
        if o.warm:
            in_loads()
        a.label('L_chk')
        a('s_waitcnt vmcnt(0)')
        a('v_xor_b32 v%d, s%d, v%d' % (t0, S_TAG, IN + 3))
        for i in range(1, 4):
            a('v_bitop3_b32 v%d, v%d, s%d, v%d bitop3:0xbe' % (t0, IN + 4 * i + 3, S_TAG, t0))
        a('v_cmp_ne_u32 vcc, 0, v%d' % t0)
        a('s_cbranch_vccz L_ok')
        a('s_mov_b64 exec, vcc')
        in_loads()
        a('s_mov_b64 exec, -1')
        a('s_sub_u32 s%d, s%d, 1' % (S_CNT, S_CNT))
        a('s_cbranch_scc0 L_chk')
        a('s_endpgm')
        a.label('L_ok')
        a.flush_hazards()
        self.stamp(10)
        unp = []
        for i in range(4):
            for hf in range(2):
                unp.append('v_lshlrev_b32 v%d, 16, v%d' % (U + 4 * i + 2 * hf, IN + 4 * i + hf))
                unp.append('v_and_b32 v%d, 0xffff0000, v%d' % (U + 4 * i + 2 * hf + 1, IN + 4 * i + hf))

        def fill(n):
            for _ in range(n):
                if unp:
                    a(unp.pop(0))
        a('v_max3_f32 v%d, v%d, v%d, v%d' % (t0, IN + 2, IN + 6, TQ))
        a('v_max3_f32 v%d, v%d, v%d, v%d' % (t0, IN + 10, IN + 14, t0))
        fill(2)
        a('v_max_f32_dpp v%d, v%d, v%d row_ror:8 row_mask:0xf bank_mask:0xf' % (t0, t0, t0))
        a('v_mov_b32 v%d, v%d' % (t1, t0))
        fill(2)
        a('v_permlane16_swap_b32 v%d, v%d' % (t0, t1))
        a('v_max_f32 v%d, v%d, v%d' % (t0, t0, t1))
        a('v_mov_b32 v%d, v%d' % (t1, t0))
        fill(2)
        a('v_permlane32_swap_b32 v%d, v%d' % (t0, t1))
        a('v_max_f32 v%d, v%d, v%d' % (t0, t0, t1))
        for i in range(4):
            a('v_sub_f32 v%d, v%d, v%d' % (W + i, IN + 4 * i + 2, t0))
        a('v_sub_f32 v%d, v%d, v%d' % (WT, TQ, t0))
        for x in (W, W + 1, W + 2, W + 3, WT):
            a('v_exp_f32 v%d, v%d' % (x, x))
            fill(2)
        fill(16)
        a('v_add_f32 v%d, v%d, v%d' % (LS, W, W + 1))
        a('v_add_f32 v%d, v%d, v%d' % (LT, W + 2, W + 3))
        for i in range(4):
            sel = 'op_sel:[0,%d,0] op_sel_hi:[1,%d,1]' % (i & 1, i & 1)
            for hf in range(2):
                if i == 0:
                    a('v_pk_mul_f32 %s, %s, %s op_sel:[0,0] op_sel_hi:[1,0]' % (
                        vr(A + 2 * hf, 2), vr(U + 2 * hf, 2), vr(W, 2)))
                else:
                    a('v_pk_fma_f32 %s, %s, %s, %s %s' % (
                        vr(A + 2 * hf, 2), vr(U + 4 * i + 2 * hf, 2), vr(W + (i & 2), 2), vr(A + 2 * hf, 2), sel))
            if i == 0:
                a('v_add_f32 v%d, v%d, v%d' % (LS, LS, LT))
            if i == 1:
                a('v_add_f32_dpp v%d, v%d, v%d row_ror:8 row_mask:0xf bank_mask:0xf' % (LS, LS, LS))
            if i == 2:
                a('v_mov_b32 v%d, v%d' % (LT, LS))
        a('v_permlane16_swap_b32 v%d, v%d' % (LS, LT))
        a('v_add_f32 v%d, v%d, v%d' % (LS, LS, LT))
        a('v_permlane32_swap_b32 v%d, v%d' % (A, A + 2))
        a('v_permlane32_swap_b32 v%d, v%d' % (A + 1, A + 3))
        a('v_mov_b32 v%d, v%d' % (LT, LS))
        a('v_pk_add_f32 %s, %s, %s' % (vr(A, 2), vr(A, 2), vr(A + 2, 2)))
        a('s_cmp_lg_u32 s97, 0')
        a('v_permlane32_swap_b32 v%d, v%d' % (LS, LT))
        a('v_permlane16_swap_b32 v%d, v%d' % (A, A + 1))
        a('v_add_f32 v%d, v%d, v%d' % (LS, LS, LT))
        a('v_add_f32 v%d, v%d, v%d' % (LS, LS, WT))
        a('v_add_f32 v%d, v%d, v%d' % (A, A, A + 1))
        a('v_rcp_f32 v%d, v%d' % (LS, LS))
        a('v_add_f32_dpp v%d, v%d, v%d row_ror:8 row_mask:0xf bank_mask:0xf' % (A, A, A))
        a('v_fmac_f32 v%d, v%d, v%d' % (A, WT, TV))
        a('v_mul_f32 v%d, v%d, v%d' % (A, A, LS))
        a('v_cvt_pk_bf16_f32 v%d, v%d, v%d' % (A, A, A))
        if o.dry:
            a('s_cbranch_scc1 L_dry')
        a('s_mov_b64 exec, s[%d:%d]' % (S_MASKLO, S_MASKLO + 1))
        a('global_store_short v%d, v%d, s[16:17]' % (COUT, A), count=False)
        a('s_cmp_lg_u32 s%d, 0' % S_SPLIT)
        a('s_cbranch_scc1 L_done')
        a('s_mov_b64 exec, 1')
        a('buffer_store_dword v%d, off, s[%d:%d], s96 sc1' % (FT + 1, SRD_W, SRD_W + 3), count=False)
        a.label('L_done')
        if o.prof == 2:
            a('s_waitcnt vmcnt(0)')
        self.stamp(11)
        self.dump_stamps(t0, (0, 9, 10, 11, 12, 13))
        a('s_endpgm')

    def build(self):
        o = self.o
        main = NAME + '_kernel'
        head = ['; tree-attention decode: split-KV flash decoding with an in-launch tagged combine (own generator)']
        head.append('; @launch grid=(256,1,1) block=(320,1,1) lds=%d' % max(LDS_TOTAL, o.lds))
        head += ['.amdgcn_target "amdgcn-amd-amdhsa--gfx950"', '.text']
        a = self.a
        a.raw('.globl %s' % main)
        a.raw('.p2align %d' % o.align)
        a.raw('.type %s,@function' % main)
        self.main_kernel(main)
        tail = ['.section .rodata,"a"', '.p2align 6', '.amdhsa_kernel %s' % main,
                '  .amdhsa_next_free_vgpr 256',
                '  .amdhsa_next_free_sgpr 102',
                '  .amdhsa_accum_offset 256',
                '  .amdhsa_group_segment_fixed_size 0',
                '  .amdhsa_kernarg_size 72',
                '  .amdhsa_user_sgpr_count 2',
                '  .amdhsa_user_sgpr_kernarg_segment_ptr 1',
                '  .amdhsa_system_sgpr_workgroup_id_x 1',
                '.end_amdhsa_kernel']
        return '\n'.join(head) + '\n' + a.text() + '\n'.join(tail) + '\n'


def main():
    p = argparse.ArgumentParser()
    p.add_argument('--prof', type=int, default=0)
    p.add_argument('--lds', type=int, default=0)
    p.add_argument('--align', type=int, default=12)
    p.add_argument('--fast', type=int, default=1)
    p.add_argument('--mid', type=int, default=0)
    p.add_argument('--dry', type=int, default=0)
    p.add_argument('--xtry', type=int, default=4)
    p.add_argument('--spin', type=int, default=200000)
    p.add_argument('--kfl', type=int, default=0)
    p.add_argument('--xd', type=int, default=0)
    p.add_argument('--ow', type=int, default=0)
    p.add_argument('--gx', type=int, default=0)
    p.add_argument('--xs', type=int, default=0)
    p.add_argument('--xw', type=int, default=0)
    p.add_argument('--warm', type=int, default=0)
    p.add_argument('--kf', default='')
    p.add_argument('--vf', default='')
    p.add_argument('-o', default='var/f4.s')
    args = p.parse_args()
    args.kf = args.kf.replace('NT', ' nt'); args.vf = args.vf.replace('NT', ' nt')
    g = Gen(args)
    txt = g.build()
    open(args.o, 'w').write(txt)
    print('wrote', args.o, 'max outstanding', g.a.maxout, 'lines', txt.count('\n'), file=sys.stderr)


if __name__ == '__main__':
    main()
```
